```python
import torch

def _softmax(x, axis=-1):
    return torch.softmax(x, dim=axis)

def _gelu(x):
    return torch.nn.functional.gelu(x, approximate='tanh')

def _silu(x):
    return torch.nn.functional.silu(x)

def _sigmoid(x):
    return torch.sigmoid(x)

def _layernorm(x, axis=-1, eps=1e-05):
    m = x.mean(dim=axis, keepdim=True)
    v = x.var(dim=axis, keepdim=True, unbiased=False)
    return (x - m) / torch.sqrt(v + eps)

def _scatter_add(tgt, idx, src, axis=0):
    return tgt.clone().index_add_(axis, idx, src)

def _segment_sum(src, seg, n):
    out = torch.zeros((n,) + src.shape[1:], dtype=src.dtype)
    return out.index_add_(0, seg, src)

def _pad(x, pw):
    flat = tuple((v for pair in reversed(pw) for v in pair))
    return torch.nn.functional.pad(x, flat)
kernel_name = 'parallel_sum__compressed_kv_cla__mixer_gmlp__prompt'

def setup_inputs():

    _w = lambda a: (lambda t: t.to(torch.bfloat16) if t.is_floating_point() else t)(torch.as_tensor(a))

    def _A_setup():
        B, H, Sq, Sk, D, M = (1, 32, 2048, 2048, 128, 640)
        Dc = 4 * D
        return {'x': _w((lambda *s: torch.randn(*s, dtype=torch.bfloat16) * 0.05)(B, Sq, M)), 'c_kv': _w((lambda *s: torch.randn(*s, dtype=torch.bfloat16) * 1.6)(B, Sk, Dc)), 'w_q': _w((lambda *s: torch.randn(*s, dtype=torch.bfloat16) * 1.6)(M, H, D) * M ** (-0.5)), 'w_uk': _w((lambda *s: torch.randn(*s, dtype=torch.bfloat16) * 1.6)(Dc, H, D) * Dc ** (-0.5)), 'w_uv': _w((lambda *s: torch.randn(*s, dtype=torch.bfloat16) * 1.6)(Dc, H, D) * Dc ** (-0.5)), 'w_o': _w((lambda *s: torch.randn(*s, dtype=torch.bfloat16) * 1.6)(H, D, M) * (H * D) ** (-0.5))}
    _A_in = _A_setup()

    def _B_setup():
        B, S, D, F = (1, 2048, 640, 1728)
        Fh = F // 2
        return {'x': _w((lambda *s: torch.randn(*s, dtype=torch.bfloat16) * 0.05)(B, S, D)), 'w_in': _w((lambda *s: torch.randn(*s, dtype=torch.bfloat16) * 0.4)(D, 2 * Fh)), 'w_sp': _w(0.01 * (lambda *s: torch.randn(*s, dtype=torch.bfloat16) * 0.4)(S, S)), 'b_sp': _w(1.0 + 0.01 * (lambda *s: torch.randn(*s, dtype=torch.bfloat16) * 0.05)(S)), 'w_out': _w((lambda *s: torch.randn(*s, dtype=torch.bfloat16) * 0.05)(Fh, D))}
    _B_in = _B_setup()
    return {'A_x': _A_in['x'], 'A_c_kv': _A_in['c_kv'], 'A_w_q': _A_in['w_q'], 'A_w_uk': _A_in['w_uk'], 'A_w_uv': _A_in['w_uv'], 'A_w_o': _A_in['w_o'], 'B_x': _B_in['x'], 'B_w_in': _B_in['w_in'], 'B_w_sp': _B_in['w_sp'], 'B_b_sp': _B_in['b_sp'], 'B_w_out': _B_in['w_out']}

def reference(A_x, A_c_kv, A_w_q, A_w_uk, A_w_uv, A_w_o, B_x, B_w_in, B_w_sp, B_b_sp, B_w_out):

    def _A_ref(x, c_kv, w_q, w_uk, w_uv, w_o):
        B, Sq, M = (x.shape[0], x.shape[1], x.shape[2])
        Sk = c_kv.shape[1]
        H, D = (w_q.shape[1], w_q.shape[2])
        q = torch.einsum('bqm,mhd->bhqd', x, w_q)
        k = torch.einsum('bkc,chd->bhkd', c_kv, w_uk)
        v = torch.einsum('bkc,chd->bhkd', c_kv, w_uv)
        scores = torch.einsum('bhqd,bhkd->bhqk', q, k) * D ** (-0.5)
        off = Sk - Sq
        qi = torch.arange(Sq)[:, None]
        kj = torch.arange(Sk)[None, :]
        cmask = kj <= qi + off
        scores = torch.where(cmask[None, None], scores, -1000000000.0)
        p = _softmax(scores, axis=-1)
        ctx = torch.einsum('bhqk,bhkd->bhqd', p, v)
        return torch.einsum('bhqd,hdm->bqm', ctx, w_o)

    def _B_ref(x, w_in, w_sp, b_sp, w_out):
        B, S, D = x.shape
        F = w_in.shape[-1]
        Fh = F // 2
        z = _gelu(torch.einsum('bsd,df->bsf', x, w_in))
        z1 = z[..., :Fh].clone()
        z2 = _layernorm(z[..., Fh:], axis=-1)
        g = torch.einsum('ts,bsf->btf', w_sp, z2) + b_sp[None, :, None]
        return torch.einsum('bsf,fd->bsd', z1 * g, w_out)
    x = A_x
    xn = _layernorm(x, axis=-1)
    return x + _A_ref(xn, A_c_kv, A_w_q, A_w_uk, A_w_uv, A_w_o) + _B_ref(xn, B_w_in, B_w_sp, B_b_sp, B_w_out)
```

```python
import re

def v(i, n=1):
    return f"v{i}" if n == 1 else f"v[{i}:{i+n-1}]"
def a(i, n=1):
    return f"a{i}" if n == 1 else f"a[{i}:{i+n-1}]"
def s(i, n=1):
    return f"s{i}" if n == 1 else f"s[{i}:{i+n-1}]"

_REG = re.compile(r'^(-?)(?:abs\()?\|?([vas])(?:(\d+)|\[(\d+):(\d+)\])\|?\)?$')

def regs_of(op):
    op = op.strip()
    if op in ('vcc',):
        return {('s', 106), ('s', 107)}
    if op == 'vcc_lo': return {('s', 106)}
    if op == 'vcc_hi': return {('s', 107)}
    if op == 'm0': return {('s', 124)}
    if op == 'exec': return {('s', 126), ('s', 127)}
    if op == 'exec_lo': return {('s', 126)}
    if op == 'exec_hi': return {('s', 127)}
    m = _REG.match(op)
    if not m:
        return set()
    k = m.group(2)
    if m.group(3) is not None:
        return {(k, int(m.group(3)))}
    return {(k, i) for i in range(int(m.group(4)), int(m.group(5)) + 1)}

TRANS = ('v_exp_f32', 'v_log_f32', 'v_rcp_f32', 'v_rsq_f32', 'v_sqrt_f32', 'v_sin_f32', 'v_cos_f32', 'v_rcp_iflag_f32')

class Ins:
    __slots__ = ('text', 'mn', 'ops', 'mods', 'rd', 'wr', 'kind', 'passes', 'A', 'B', 'C', 'D', 'lds_dma', 'data', 'tag', 'nop')
    def __init__(self, text):
        self.text = text
        t = text.split(';')[0].strip()
        parts = t.split(None, 1)
        self.mn = parts[0]
        rest = parts[1] if len(parts) > 1 else ''
        ops = []
        cur = ''
        depth = 0
        for ch in rest:
            if ch in '[(': depth += 1
            if ch in '])': depth -= 1
            if ch == ',' and depth == 0:
                ops.append(cur.strip()); cur = ''
            else:
                cur += ch
        if cur.strip(): ops.append(cur.strip())
        mods = ''
        if ops:
            last = ops[-1].split(None, 1)
            if len(last) > 1 and not self.mn.startswith('s_waitcnt'):
                ops[-1] = last[0]; mods = last[1]
        self.ops = ops; self.mods = mods
        self.rd = set(); self.wr = set(); self.passes = 0
        self.A = self.B = self.C = self.D = set(); self.lds_dma = False; self.data = set()
        self.nop = 1
        mn = self.mn
        R = regs_of
        if mn.startswith('v_mfma'):
            self.kind = 'mfma'
            self.D = R(ops[0]); self.A = R(ops[1]); self.B = R(ops[2]); self.C = R(ops[3])
            self.wr = set(self.D); self.rd = self.A | self.B | self.C
            self.passes = 8 if '32x32x16' in mn else 4 if '16x16x32' in mn else 16
        elif mn.startswith('v_'):
            self.kind = 'valu'
            if mn.startswith('v_cmp'):
                self.wr = R(ops[0])
                if mn.startswith('v_cmpx'): self.wr |= R('exec')
                for o in ops[1:]: self.rd |= R(o)
            elif mn.startswith('v_permlane') and 'swap' in mn:
                self.wr = R(ops[0]) | R(ops[1]); self.rd = set(self.wr)
            elif mn.startswith(('v_add_co', 'v_sub_co', 'v_subrev_co', 'v_addc_co', 'v_subb_co', 'v_mad_u64_u32', 'v_div_scale')):
                self.wr = R(ops[0]) | R(ops[1])
                for o in ops[2:]: self.rd |= R(o)
            elif mn == 'v_nop':
                pass
            else:
                self.wr = R(ops[0])
                for o in ops[1:]: self.rd |= R(o)
                if mn.startswith(('v_fmac', 'v_pk_fmac', 'v_dot2c', 'v_writelane')) or 'dpp' in mn or 'row_' in mods or 'quad_perm' in mods or 'op_sel' in mods and 'cvt' not in mn and not mn.startswith('v_pk'):
                    self.rd |= R(ops[0])
                if mn.startswith('v_cndmask') and len(ops) == 3: self.rd |= R('vcc')
        elif mn.startswith('ds_'):
            self.kind = 'ds'
            if mn.startswith(('ds_read', 'ds_bpermute', 'ds_permute', 'ds_swizzle')):
                self.wr = R(ops[0])
                for o in ops[1:]: self.rd |= R(o)
            else:
                for o in ops: self.rd |= R(o)
                for o in ops[1:]: self.data |= R(o)
        elif mn.startswith('buffer_'):
            self.kind = 'vmem'
            if mn.startswith(('buffer_wbl2', 'buffer_inv')):
                pass
            elif 'lds' in mods.split():
                self.lds_dma = True
                for o in ops: self.rd |= R(o)
                self.rd |= R('m0')
            elif mn.startswith('buffer_load'):
                self.wr = R(ops[0])
                for o in ops[1:]: self.rd |= R(o)
            else:
                for o in ops: self.rd |= R(o)
                self.data = R(ops[0])
                if 'atomic' in mn and 'sc0' in mods.split(): self.wr = R(ops[0])
        elif mn.startswith('global_'):
            self.kind = 'vmem'
            if mn.startswith('global_load_lds'):
                self.lds_dma = True
                for o in ops: self.rd |= R(o)
                self.rd |= R('m0')
            elif mn.startswith('global_load'):
                self.wr = R(ops[0])
                for o in ops[1:]: self.rd |= R(o)
            elif 'atomic' in mn and 'sc0' in mods.split():
                self.wr = R(ops[0])
                for o in ops[1:]: self.rd |= R(o)
            else:
                for o in ops: self.rd |= R(o)
                self.data = R(ops[1])
        elif mn.startswith(('s_load', 's_buffer_load', 's_memtime', 's_memrealtime', 's_atomic')):
            self.kind = 'smem'
            self.wr = R(ops[0])
            for o in ops[1:]: self.rd |= R(o)
        elif mn.startswith('s_'):
            self.kind = 'salu'
            if mn == 's_nop':
                self.nop = int(ops[0], 0) + 1
            elif mn.startswith(('s_waitcnt', 's_barrier', 's_branch', 's_cbranch', 's_endpgm', 's_setprio', 's_sleep', 's_cmp', 's_bitcmp')):
                for o in ops: self.rd |= R(o)
            else:
                if ops: self.wr = R(ops[0])
                for o in ops[1:]: self.rd |= R(o)
                if 'saveexec' in mn: self.wr |= R('exec'); self.rd |= R('exec')
                if mn.startswith(('s_addk', 's_mulk', 's_cmov')): self.rd |= R(ops[0])
        else:
            raise ValueError("unknown instruction: " + text)

def _vg(rs):
    return {r for r in rs if r[0] in 'va'}
def _sg(rs):
    return {r for r in rs if r[0] == 's'}

def required_gap(p, c):
    need = 0
    if p.kind == 'mfma':
        xdl = {4: (0, 6, 8, 3), 8: (0, 10, 12, 7), 16: (0, 18, 20, 15)}[p.passes]
        if c.kind == 'mfma':
            if c.C & p.D:
                if c.C == p.D and c.passes == p.passes: need = max(need, xdl[0])
                else: need = max(need, xdl[1])
            if (c.A | c.B) & p.D: need = max(need, xdl[2])
            if (c.D & p.D) and not (c.C == p.D): need = max(need, xdl[1])
        elif c.kind in ('valu', 'ds', 'vmem'):
            if (c.rd | c.wr) & p.D: need = max(need, xdl[2])
            if c.kind == 'valu' and (c.wr & p.C): need = max(need, xdl[3])
            if c.kind in ('ds', 'vmem') and (c.wr & p.C): need = max(need, xdl[3])
    elif p.kind == 'valu':
        pw_v = _vg(p.wr); pw_s = _sg(p.wr)
        if c.kind == 'mfma':
            if c.rd & pw_v: need = max(need, 2)
            if ('s', 126) in pw_s: need = max(need, 4)
        if c.kind == 'valu':
            if c.mn.startswith('v_permlane') and (c.rd & pw_v): need = max(need, 2)
            if c.mn.startswith(('v_readlane', 'v_readfirstlane')) and (c.rd & pw_v): need = max(need, 1)
            if ('dpp' in c.mn or 'row_' in c.mods or 'quad_perm' in c.mods or 'wave_' in c.mods) and (c.rd & pw_v): need = max(need, 2)
            if p.mn.startswith(TRANS) and not c.mn.startswith(TRANS) and ((c.rd) & pw_v): need = max(need, 1)
            if pw_s & c.rd:
                need = max(need, 2)
                if c.mn.startswith(('v_readlane', 'v_writelane')): need = max(need, 4)
                if c.mn.startswith('v_div_fmas'): need = max(need, 4)
            if ('s', 126) in pw_s:
                if c.mn.startswith(('v_readlane', 'v_readfirstlane', 'v_writelane', 'v_permlane')): need = max(need, 4)
                if 'dpp' in c.mn or 'row_' in c.mods: need = max(need, 5)
            if ('op_sel' in p.mods or 'sdwa' in p.mn or 'dst_sel' in p.mods) and (c.rd & pw_v): need = max(need, 1)
        if c.kind == 'vmem' and (pw_s & c.rd): need = max(need, 5)
        if p.mn.startswith(TRANS) and c.kind in ('vmem', 'ds') and (c.rd & pw_v): need = max(need, 1)
    elif p.kind == 'vmem':
        if p.data and len(p.data) >= 3:
            if c.wr & p.data: need = max(need, 2 if c.kind == 'valu' or c.kind == 'mfma' else 1)
    elif p.kind == 'salu':
        if ('s', 124) in p.wr and (c.lds_dma or 'addtid' in c.mn): need = max(need, 1)
    return need

def check_hazards(seq, fix=False, name=''):
    out = []
    probs = []
    for c in seq:
        dist = 0
        worst = 0
        for p in reversed(out[-24:]):
            need = required_gap(p, c)
            if need > dist:
                worst = max(worst, need - dist)
                if not fix:
                    probs.append(f"{name}: hazard need {need} have {dist}: [{p.text.strip()}] -> [{c.text.strip()}]")
            dist += p.nop
            if dist >= 21: break
        if fix and worst > 0:
            while worst > 0:
                n = min(worst, 16)
                out.append(Ins(f"s_nop {n-1}"))
                worst -= n
        out.append(c)
    return out if fix else probs

_W = re.compile(r'(vmcnt|lgkmcnt|expcnt)\((\d+)\)')
def check_waits(seq, name=''):
    vm = []
    lg = []
    probs = []
    for c in seq:
        if c.mn == 's_waitcnt':
            for k, n in _W.findall(c.text.split(';')[0]):
                n = int(n)
                if k == 'vmcnt':
                    if len(vm) > n: vm = vm[len(vm) - n:] if n else []
                elif k == 'lgkmcnt':
                    if any(x.kind == 'smem' for x in lg):
                        if n == 0: lg = []
                    else:
                        if len(lg) > n: lg = lg[len(lg) - n:] if n else []
            continue
        touch = c.rd | c.wr
        for o in vm:
            if o.wr & touch:
                probs.append(f"{name}: missing vmcnt wait: [{o.text.strip()}] -> [{c.text.strip()}]")
            if o.data and False: pass
        for o in lg:
            if o.wr & touch and not (c.kind == 'ds' and o.kind == 'ds' and not (o.wr & c.rd)):
                probs.append(f"{name}: missing lgkmcnt wait: [{o.text.strip()}] -> [{c.text.strip()}]")
        if c.kind == 'vmem':
            vm.append(c)
            if len(vm) > 63: probs.append(f"{name}: more than 63 vmem outstanding at [{c.text.strip()}]")
        elif c.kind in ('ds', 'smem'):
            lg.append(c)
    return probs

class Asm:
    def __init__(self):
        self.blocks = []
        self.cur = None
        self.new_block(None)
    def new_block(self, label):
        self.cur = []
        self.blocks.append([label, self.cur])
    def label(self, name):
        self.new_block(name)
    def __call__(self, text):
        for line in text.split('\n'):
            t = line.strip()
            if not t: continue
            if t.startswith(';') or t.startswith('.'):
                self.cur.append(t); continue
            if t.endswith(':'):
                self.label(t[:-1]); continue
            self.cur.append(Ins(t))
    def block(self, name):
        for l, b in self.blocks:
            if l == name: return [x for x in b if isinstance(x, Ins)]
        raise KeyError(name)
    def fix_blocks(self):
        prev_tail = []
        for ent in self.blocks:
            b = ent[1]
            out = []
            hist = list(prev_tail)
            for x in b:
                if isinstance(x, str):
                    out.append(x); continue
                fixed = check_hazards(hist + [x], fix=True)
                new = fixed[len(hist):]
                out.extend(new)
                hist = (hist + new)[-24:]
            ent[1][:] = out
            prev_tail = hist
    def trace(self, names):
        seq = []
        for n in names: seq += self.block(n)
        return seq
    def check(self, names, name=''):
        seq = self.trace(names)
        return check_hazards(seq, name=name) + check_waits(seq, name=name)
    def text(self):
        out = []
        for l, b in self.blocks:
            if l: out.append(f"{l}:")
            for x in b:
                out.append("    " + (x if isinstance(x, str) else x.text))
        return '\n'.join(out) + '\n'
    def count(self):
        return sum(1 for l, b in self.blocks for x in b if isinstance(x, Ins))

def kernel_wrap(name, body, vgpr, sgpr=102, accum=None, wg_y=False):
    if accum is None: accum = (min(vgpr, 256) + 3) // 4 * 4
    txt = f""".text
.globl {name}
.p2align 8
.type {name},@function
{name}:
{body}
.section .rodata,"a"
.p2align 6
.amdhsa_kernel {name}
  .amdhsa_next_free_vgpr {vgpr}
  .amdhsa_next_free_sgpr {sgpr}
  .amdhsa_accum_offset {accum}
  .amdhsa_group_segment_fixed_size 0
  .amdhsa_kernarg_size 112
  .amdhsa_user_sgpr_count 2
  .amdhsa_user_sgpr_kernarg_segment_ptr 1
  .amdhsa_system_sgpr_workgroup_id_x 1
{'  .amdhsa_system_sgpr_workgroup_id_y 1' if wg_y else ''}
.end_amdhsa_kernel
"""
    return txt
```

```python
from asmlib import *

A_X, A_CKV, A_WQ, A_WUK, A_WUV, A_WO, B_X, B_WIN, B_WSP, B_BSP, B_WOUT, D_OUT, D_DBG, D_WS = [8 * i for i in range(14)]
MB = 1 << 20
WS_XN = 0
WS_KV = 4 * MB
WS_Z1 = 40 * MB
WS_Z2 = 44 * MB
WS_Z2N = 48 * MB
WS_CTX = 52 * MB
WS_U = 72 * MB
WS_P = 76 * MB
SZ_XN = 2048 * 640 * 2
SZ_KV = 32 * MB
SZ_Z = 2048 * 864 * 2
SZ_CTX = 16 * MB
SZ_P = 2 * 128 * 40 * 1024

def srd(A, d, base_lo, base_hi, off, size):
    if off == 0:
        A(f"s_mov_b32 s{d}, s{base_lo}")
        A(f"s_mov_b32 s{d+1}, s{base_hi}")
    else:
        A(f"s_add_u32 s{d}, s{base_lo}, {off}")
        A(f"s_addc_u32 s{d+1}, s{base_hi}, 0")
    A(f"s_mov_b32 s{d+2}, {size}")
    A(f"s_mov_b32 s{d+3}, 0x20000")

def interleave(A, mf, fill, start=0, end=None):
    n = len(mf)
    if end is None: end = n
    span = end - start
    k = 0
    for i, m in enumerate(mf):
        A(m)
        if start <= i < end:
            hi = len(fill) * (i - start + 1) // span
            while k < hi:
                f = fill[k]
                if isinstance(f, str): A(f)
                else:
                    for x in f: A(x)
                k += 1
    assert k == len(fill)

def mfma16(d, x, y, c=None):
    return f"v_mfma_f32_16x16x32_bf16 {d}, {x}, {y}, {d if c is None else c}"

def fbits(x):
    import struct
    return "0x%08x" % struct.unpack("<I", struct.pack("<f", x))[0]

def round_bf16(A, dst, src):
    A(f"v_cvt_pk_bf16_f32 {dst}, {src}, {src}")
    A(f"v_and_b32 {dst}, 0xffff0000, {dst}")

def layernorm_regs(A, data, nd, tmp, N, reduce_fn, validmul=None):
    f = tmp; s0 = tmp + 2 * nd; s1 = s0 + 1; t0 = s0 + 2; mean = s0 + 3; mb = s0 + 4; rs = s0 + 5
    for i in range(nd):
        A(f"v_lshlrev_b32 v{f+2*i}, 16, v{data+i}")
        A(f"v_and_b32 v{f+2*i+1}, 0xffff0000, v{data+i}")
    A(f"v_add_f32 v{s0}, v{f}, v{f+2}")
    A(f"v_add_f32 v{s1}, v{f+1}, v{f+3}")
    for i in range(2, nd):
        A(f"v_add_f32 v{s0}, v{s0}, v{f+2*i}")
        A(f"v_add_f32 v{s1}, v{s1}, v{f+2*i+1}")
    A(f"v_add_f32 v{s0}, v{s0}, v{s1}")
    reduce_fn(A, s0, t0)
    A(f"v_mul_f32 v{mean}, {fbits(1.0/N)}, v{s0}")
    round_bf16(A, f"v{mb}", f"v{mean}")
    A(f"v_mov_b32 v{s0}, 0")
    A(f"v_mov_b32 v{s1}, 0")
    for i in range(nd):
        A(f"v_sub_f32 v{t0}, v{f+2*i}, v{mean}")
        A(f"v_sub_f32 v{rs}, v{f+2*i+1}, v{mean}")
        A(f"v_fmac_f32 v{s0}, v{t0}, v{t0}")
        A(f"v_fmac_f32 v{s1}, v{rs}, v{rs}")
    A(f"v_add_f32 v{s0}, v{s0}, v{s1}")
    if validmul is not None:
        A(f"v_mul_f32 v{s0}, v{s0}, v{validmul}")
    reduce_fn(A, s0, t0)
    A(f"v_mul_f32 v{s0}, {fbits(1.0/N)}, v{s0}")
    round_bf16(A, f"v{s0}", f"v{s0}")
    A(f"v_add_f32 v{s0}, {fbits(1e-5)}, v{s0}")
    round_bf16(A, f"v{s0}", f"v{s0}")
    A(f"v_sqrt_f32 v{s0}, v{s0}")
    round_bf16(A, f"v{s0}", f"v{s0}")
    A(f"v_rcp_f32 v{rs}, v{s0}")
    for i in range(nd):
        A(f"v_sub_f32 v{f+2*i}, v{f+2*i}, v{mb}")
        A(f"v_sub_f32 v{f+2*i+1}, v{f+2*i+1}, v{mb}")
        A(f"v_cvt_pk_bf16_f32 v{data+i}, v{f+2*i}, v{f+2*i+1}")
        A(f"v_lshlrev_b32 v{f+2*i}, 16, v{data+i}")
        A(f"v_and_b32 v{f+2*i+1}, 0xffff0000, v{data+i}")
        A(f"v_mul_f32 v{f+2*i}, v{f+2*i}, v{rs}")
        A(f"v_mul_f32 v{f+2*i+1}, v{f+2*i+1}, v{rs}")
        A(f"v_cvt_pk_bf16_f32 v{data+i}, v{f+2*i}, v{f+2*i+1}")

def swap_reduce(A, op, r, t, which):
    A(f"v_mov_b32 v{t}, v{r}")
    A(f"v_permlane{which}_swap_b32 v{t}, v{r}")
    A(f"{op} v{r}, v{r}, v{t}")

import os
STAMP = bool(os.environ.get("STAMP"))
class Stamper:
    def __init__(self, A, on): self.A = A; self.n = 0; self.on = on and STAMP
    def __call__(self, idx=None):
        if not self.on: return
        i = self.n if idx is None else idx
        self.A(f"s_memrealtime s[96:97]")
        self.A("s_waitcnt lgkmcnt(0)")
        self.A(f"s_mov_b32 s{64+i}, s96")
        self.n = i + 1
    def dump(self, ws_lo, ws_hi, swave, nw=4):
        if not self.on: return
        A = self.A
        srd(A, 96, ws_lo, ws_hi, 200 * MB, 1 * MB)
        A(f"s_mul_i32 s100, s2, {nw}")
        A(f"s_add_u32 s100, s100, {swave}")
        A("s_lshl_b32 s100, s100, 7")
        A("v_mov_b32 v1, 0")
        for i in range(32):
            A(f"v_mov_b32 v2, s{64+i}")
            A(f"buffer_store_dword v2, v1, s[96:99], s100 offen offset:{4*i}")
```

```python
from common import *


def setup_xrow_dma(A, vd, pitch):
    A("v_and_b32 v1, 63, v0")
    A("v_lshrrev_b32 v2, 3, v1")
    A(f"v_mul_u32_u24 v2, {pitch}, v2")
    A("v_lshrrev_b32 v3, 4, v1")
    A("v_and_b32 v1, 7, v1")
    A("v_xor_b32 v1, v1, v3")
    A("v_lshl_add_u32 v2, v1, 4, v2")
    for k in range(4):
        if k & 1:
            A(f"v_xor_b32 v{vd+k}, 64, v2")
        else:
            A(f"v_mov_b32 v{vd+k}, v2")
        if k: A(f"v_add_u32 v{vd+k}, {k*(8*pitch-1024)}, v{vd+k}")

def setup_xrow_read(A, vr, sBase):
    A("v_and_b32 v1, 15, v0")
    A("v_bfe_u32 v2, v0, 4, 2")
    A("v_lshrrev_b32 v3, 1, v1")
    A("v_xor_b32 v2, v2, v3")
    A("v_lshlrev_b32 v2, 4, v2")
    A("v_lshl_add_u32 v2, v1, 7, v2")
    A(f"v_add_u32 v{vr}, {sBase}, v2")
    A(f"v_xor_b32 v{vr+1}, 64, v{vr}")

def setup_xfrag_dma(A, vd, rbpitch):
    A("v_and_b32 v1, 63, v0")
    A(f"v_lshlrev_b32 v{vd}, 4, v1")
    A(f"v_add_u32 v{vd+1}, {rbpitch-2048}, v{vd}")

def fsw(order):
    if order == 'nat': return lambda r: (r & 3) | (((r >> 3) & 1) << 2)
    return lambda r: r & 7

def setup_w_dma(A, vd, gpitch, BN, order):
    cpr = BN // 8
    n = 16 * cpr // 64
    A("v_and_b32 v1, 63, v0")
    for k in range(n):
        d = vd + k
        A(f"v_add_u32 v2, {k*64}, v1")
        if cpr & (cpr - 1) == 0:
            sh = cpr.bit_length() - 1
            A(f"v_lshrrev_b32 v3, {sh}, v2")
            A(f"v_and_b32 v2, {cpr-1}, v2")
        else:
            assert cpr in (20, 10)
            A(f"v_mul_u32_u24 v3, {(65536 + cpr - 1)//cpr}, v2")
            A("v_lshrrev_b32 v3, 16, v3")
            A(f"v_mul_u32_u24 v{d}, {cpr}, v3")
            A(f"v_sub_u32 v2, v2, v{d}")
        if cpr & (cpr - 1) == 0:
            if order == 'nat':
                A(f"v_lshrrev_b32 v{d}, 1, v3")
                A(f"v_and_b32 v{d}, 4, v{d}")
                A(f"v_and_or_b32 v{d}, v3, 3, v{d}")
            else:
                A(f"v_and_b32 v{d}, 7, v3")
        else:
            if order == 'nat': A(f"v_bfe_u32 v{d}, v3, 3, 1")
            else: A(f"v_bfe_u32 v{d}, v3, 2, 1")
        A(f"v_lshlrev_b32 v{d}, 1, v{d}")
        A(f"v_xor_b32 v2, v2, v{d}")
        A(f"v_mul_u32_u24 v3, {gpitch}, v3")
        A(f"v_lshl_add_u32 v{d}, v2, 4, v3")
        if k & 3: A(f"v_subrev_u32 v{d}, {(k&3)*1024}, v{d}")
    return n

def setup_w_read(A, vr, BN, order, sBase, sT0, NT=None):
    if NT is None: NT = BN // 32
    pitch = BN * 2
    pow2 = (BN & (BN - 1)) == 0
    A("v_and_b32 v1, 15, v0")
    A("v_bfe_u32 v2, v0, 4, 2")
    A("v_lshrrev_b32 v3, 2, v1")
    A(f"v_lshl_add_u32 v{vr}, v2, {3 if order == 'nat' else 2}, v3")
    if pow2:
        A("v_and_b32 v2, 1, v2")
        A("v_lshl_add_u32 v2, v2, 2, v3")
    else:
        A("v_and_b32 v2, 1, v2")
    A(f"v_mul_u32_u24 v3, {pitch}, v{vr}")
    A("v_and_b32 v1, 3, v1")
    A("v_lshl_add_u32 v3, v1, 3, v3")
    A(f"v_add_u32 v3, {sBase}, v3")
    for t in range(NT):
        A(f"v_mov_b32 v1, {t}")
        A(f"v_add_u32 v1, {sT0}, v1")
        A("v_xor_b32 v1, v1, v2")
        A(f"v_lshl_add_u32 v{vr+t}, v1, 5, v3")

def w_reads(dst_fn, vr, BN, order, slot_off, NT=None):
    if NT is None: NT = BN // 32
    pitch = BN * 2
    out = []
    for ks in range(2):
        for t in range(NT):
            k, i = dst_fn(t, ks)
            for h in range(2):
                off = slot_off + (32 * ks + (4 if order == 'nat' else 16) * h) * pitch
                assert off < 65536, off
                out.append(f"ds_read_b64_tr_b16 {k}[{i+2*h}:{i+2*h+1}], v{vr+t} offset:{off}")
    return out

def dma_group(m0_expr, soff_expr, srd, vregs, stmp):
    out = []
    first = [f"s_add_u32 m0, {m0_expr[0]}, {m0_expr[1]}", f"s_add_u32 {stmp}, {soff_expr[0]}, {soff_expr[1]}"]
    for k, vr in enumerate(vregs):
        ins = f"buffer_load_dwordx4 v{vr}, s[{srd}:{srd+3}], {stmp} offen offset:{k*1024} lds"
        out.append(first + [ins] if k == 0 else ins)
    return out

def merge(*lists):
    items = []
    for li, l in enumerate(lists):
        for i, x in enumerate(l):
            items.append(((i + 0.5) / len(l), li, i, x))
    items.sort(key=lambda t: (t[0], t[1], t[2]))
    return [t[3] for t in items]

class VM:
    def __init__(self): self.ops = []
    def add(self, tag, n=1): self.ops += [tag] * n
    def count(self, *tags):
        last = -1
        for i, t in enumerate(self.ops):
            if t in tags: last = i
        n = len(self.ops) - 1 - last
        return min(n, 63)

def emit(A, l):
    for f in l:
        if isinstance(f, str): A(f)
        else:
            for x in f: A(x)
```

```python
from common import *

def k0(name="k0_ln_kernel"):
    A = Asm()
    A(f"""
    s_cmp_ge_u32 s2, 128
    s_cbranch_scc1 {name}_end
    s_load_dwordx2 s[4:5], s[0:1], {A_X}
    s_load_dwordx2 s[6:7], s[0:1], {D_WS}
    v_and_b32 v1, 3, v0
    v_lshrrev_b32 v2, 6, v0
    v_lshl_add_u32 v1, v2, 2, v1
    v_bfe_u32 v2, v0, 2, 4                ; c
    v_mul_u32_u24 v3, 1280, v1
    v_lshl_add_u32 v3, v2, 4, v3
    v_lshrrev_b32 v4, 2, v2
    v_lshlrev_b32 v4, 10, v4
    v_and_b32 v5, 3, v2
    v_lshl_add_u32 v4, v5, 8, v4
    v_lshl_add_u32 v4, v1, 4, v4
    s_mul_i32 s3, s2, 20480
    s_waitcnt lgkmcnt(0)
    """)
    srd(A, 8, 4, 5, 0, SZ_XN)
    srd(A, 12, 6, 7, WS_XN, SZ_XN)
    for i in range(5):
        A(f"buffer_load_dwordx4 {v(8+4*i,4)}, v3, s[8:11], s3 offen offset:{i*256}")
    A("s_waitcnt vmcnt(0)")
    def red(A, r, t):
        A(f"v_add_f32_dpp v{r}, v{r}, v{r} row_ror:4 row_mask:0xf bank_mask:0xf")
        A(f"v_add_f32_dpp v{r}, v{r}, v{r} row_ror:8 row_mask:0xf bank_mask:0xf")
        swap_reduce(A, "v_add_f32", r, t, 16)
        swap_reduce(A, "v_add_f32", r, t, 32)
    layernorm_regs(A, 8, 20, 28, 640, red)
    for i in range(5):
        A(f"s_add_u32 s16, s3, {i*4096}")
        A(f"buffer_store_dwordx4 {v(8+4*i,4)}, v4, s[12:15], s16 offen")
    A(f"{name}_end:")
    A("s_endpgm")
    A.fix_blocks()
    return f"; @launch kernel={name} grid=(128,1,1) block=(256,1,1) lds=0", kernel_wrap(name, A.text(), 80, sgpr=24), A
```

```python
from gemm import *

GELU_C0 = -2.0 * 0.7978845608028654 * 1.4426950408889634
GELU_C1 = GELU_C0 * 0.044715

def k1(name="k1_kvz_kernel"):
    A = Asm()
    ST = Stamper(A, os.environ.get("STAMP") == "k1")
    ST()
    A(f"""
    s_cmp_ge_u32 s2, 256
    s_cbranch_scc1 {name}_end
    s_load_dwordx2 s[4:5], s[0:1], {A_CKV}
    s_load_dwordx4 s[36:39], s[0:1], {A_WUK}
    s_load_dwordx2 s[6:7], s[0:1], {D_WS}
    s_load_dwordx2 s[40:41], s[0:1], {B_WIN}
    v_lshrrev_b32 v1, 6, v0
    v_readfirstlane_b32 s20, v1
    s_and_b32 s23, s2, 7
    s_lshr_b32 s24, s2, 3
    s_lshr_b32 s21, s20, 1
    s_and_b32 s22, s20, 1
    s_lshl_b32 s25, s20, 13
    s_and_b32 s30, s24, 7                 ; mtile
    s_lshr_b32 s31, s24, 3                ; nsel
    s_and_b32 s32, s31, 1
    s_lshl_b32 s32, s32, 1
    s_lshl_b32 s33, s23, 2
    s_add_u32 s32, s32, s33
    s_lshl_b32 s33, s30, 18               ; mtile*256KB
    s_lshl_b32 s34, s32, 8
    s_sub_u32 s35, {512*8192}, s34
    s_lshl_b32 s26, s20, 16               ; w*64 rows*1024
    s_lshl_b32 s27, s20, 17               ; w*16 rows*8192
    """)
    setup_xrow_dma(A, 4, 1024)
    setup_w_dma(A, 8, 8192, 256, 'nat')
    A("s_waitcnt lgkmcnt(0)")
    srd(A, 8, 4, 5, "s33", 256 * 1024)
    A("s_cmp_ge_u32 s31, 2")
    A("s_cselect_b32 s36, s38, s36")
    A("s_cselect_b32 s37, s39, s37")
    srd(A, 12, 36, 37, "s34", "s35")
    srd(A, 16, 6, 7, WS_KV, SZ_KV)

    def kv_dma(st):
        slot = st & 1
        f = []
        f += dma_group(("s25", slot * 32768), ("s26", st * 128), 8, [4, 5, 6, 7], "s28")
        f += dma_group(("s25", slot * 32768 + 4096), ("s26", st * 128 + 32 * 1024), 8, [4, 5, 6, 7], "s28")
        f += dma_group(("s25", 65536 + slot * 32768), ("s27", st * 64 * 8192), 12, [8, 9, 10, 11], "s28")
        f += dma_group(("s25", 65536 + slot * 32768 + 4096), ("s27", st * 64 * 8192), 12, [12, 13, 14, 15], "s28")
        return f
    def emit(l):
        for f in l:
            if isinstance(f, str): A(f)
            else:
                for x in f: A(x)
    emit(kv_dma(0)); emit(kv_dma(1))
    A("s_lshl_b32 s28, s21, 14")
    setup_xrow_read(A, 16, "s28")
    A("s_mov_b32 s28, 65536")
    A("s_lshl_b32 s29, s22, 3")
    setup_w_read(A, 18, 256, 'nat', "s28", "s29")
    A("v_and_b32 v26, 63, v0")
    A("v_lshlrev_b32 v26, 4, v26")
    for i in range(32, 256): A(f"v_mov_b32 v{i}, 0")
    for i in range(32): A(f"v_accvgpr_write_b32 a{i}, 0")

    def accreg(slotidx):
        return v(32 + 4 * slotidx, 4) if slotidx < 56 else a(4 * (slotidx - 56), 4)
    wreg = lambda par, nt, ks: 32 + par * 64 + (ks * 8 + nt) * 4
    xreg = lambda mt, ks: 160 + (mt * 2 + ks) * 4
    def xreads(st, half):
        return [f"ds_read_b128 {a(xreg(mt, ks), 4)}, v{16+ks} offset:{(st&1)*32768 + mt*2048}"
                for mt in range(4 * half, 4 * half + 4) for ks in range(2)]
    def wreads(st):
        return w_reads(lambda t, ks: ('a', wreg(st & 1, t, ks)), 18, 256, 'nat', (st & 1) * 32768)

    ZR = 4
    def z_setup():
        l = Asm()
        l("""
        s_and_b32 s42, s24, 1
        s_lshl_b32 s43, s23, 1
        s_add_u32 s42, s42, s43               ; z mtile
        s_lshr_b32 s43, s24, 1                ; z ntile
        s_mul_i32 s33, s42, 163840
        s_lshl_b32 s34, s43, 8
        """)
        l(f"s_sub_u32 s35, {640*3456}, s34")
        srd(l, 8, 6, 7, "s33", 163840)
        srd(l, 12, 40, 41, "s34", "s35")
        l("s_mul_i32 s26, s20, 40960")
        l(f"s_mul_i32 s27, s20, {16*3456}")
        l("s_lshl_b32 s25, s20, 12")
        setup_xfrag_dma(l, 4, 20480)
        setup_w_dma(l, 8, 3456, 128, 'nat')
        return [x.text for x in l.blocks[0][1]]
    def z_dma(st):
        slot = st % ZR
        f = []
        f += dma_group(("s25", slot * 16384), ("s26", st * 2048), 8, [4, 4, 5, 5], "s28")
        f += dma_group(("s25", 65536 + slot * 16384), ("s27", st * 64 * 3456), 12, [8, 9, 10, 11], "s28")
        return f

    ST()
    A("s_waitcnt vmcnt(16)")
    A("s_barrier")
    ST()
    emit(wreads(0)); emit(xreads(0, 0))
    A("s_cmp_ge_u32 s31, 2")
    A(f"s_cbranch_scc1 {name}_v")
    for variant in ("k", "v"):
        A.label(f"{name}_{variant}")
        if variant == "k": idx = lambda mt, nt: mt * 8 + nt
        else: idx = lambda mt, nt: (mt >> 1) * 16 + nt * 2 + (mt & 1)
        def mf(st, half):
            out = []
            for mt in range(4 * half, 4 * half + 4):
                for nt in range(8):
                    for ks in range(2):
                        w = a(wreg(st & 1, nt, ks), 4); x = a(xreg(mt, ks), 4)
                        d = accreg(idx(mt, nt))
                        out.append(mfma16(d, w, x) if variant == "k" else mfma16(d, x, w))
            return out
        for st in range(8):
            A("s_waitcnt lgkmcnt(0)")
            interleave(A, mf(st, 0), xreads(st, 1), 0, 32)
            ST(3 + 2 * st)
            A("s_waitcnt vmcnt(0) lgkmcnt(0)")
            A("s_barrier")
            ST(4 + 2 * st)
            fill = []
            if st + 2 < 8: fill += kv_dma(st + 2)
            if st + 1 < 8: fill += xreads(st + 1, 0) + wreads(st + 1)
            if st == 7:
                fill = z_setup()
                interleave(A, mf(st, 1), fill, 0, 60)
            else:
                interleave(A, mf(st, 1), fill, 0, 58)
        A("s_cmp_ge_u32 s24, 28")
        A(f"s_cbranch_scc1 {name}_{variant}_epi")
        A.label(f"{name}_{variant}_zpro")
        for st in range(ZR): emit(z_dma(st))
        A.label(f"{name}_{variant}_epi")
        ST(19)
        A("s_add_u32 s28, s32, s22")
        A("s_lshl_b32 s28, s28, 6")
        A("s_lshl_b32 s29, s30, 3")
        A("s_add_u32 s28, s28, s29")
        A("s_lshl_b32 s29, s21, 2")
        A("s_add_u32 s28, s28, s29")
        A("s_lshl_b32 s28, s28, 14")
        if variant == "v": A("s_add_u32 s28, s28, 8192")
        order = list(range(32))
        for p in order:
            if 2 * p < 56:
                r = 32 + 8 * p
            else:
                r = 32 + 8 * (p - 28)
                for i in range(8): A(f"v_accvgpr_read_b32 v{r+i}, a{8*(p-28)+i}")
            for i in range(4): A(f"v_cvt_pk_bf16_f32 v{r+i}, v{r+2*i}, v{r+2*i+1}")
            off = (p >> 3) * 16384 + (p & 7) * 1024
            if (p & 3) == 0: A(f"s_add_u32 s29, s28, {off}")
            if p == 31: A("s_waitcnt vmcnt(62)")
            A(f"buffer_store_dwordx4 {v(r,4)}, v26, s[16:19], s29 offen offset:{(p&3)*1024}")
        if variant == "k": A(f"s_branch {name}_z")
    A.label(f"{name}_z")
    ST(20)
    A("s_cmp_ge_u32 s24, 28")
    A(f"s_cbranch_scc1 {name}_end")
    A.label(f"{name}_z2")
    A("s_lshl_b32 s28, s21, 13")
    A("v_add_u32 v16, s28, v26")
    A("s_mov_b32 s28, 65536")
    A("s_lshl_b32 s29, s22, 2")
    setup_w_read(A, 18, 128, 'nat', "s28", "s29")
    srd(A, 16, 6, 7, WS_Z1, SZ_Z)
    srd(A, 44, 6, 7, WS_Z2, SZ_Z)
    zacc = lambda mt, nt: 64 + (mt * 4 + nt) * 4
    for i in range(64, 128): A(f"v_mov_b32 v{i}, 0")
    zw = lambda par, nt, ks: 32 + par * 32 + (ks * 4 + nt) * 4
    zx = lambda par, mt, ks: 160 + par * 32 + (mt * 2 + ks) * 4
    def zreads(st):
        slot = st % ZR
        r = [f"ds_read_b128 {a(zx(st&1, mt, ks), 4)}, v16 offset:{slot*16384 + mt*2048 + ks*1024}" for mt in range(4) for ks in range(2)]
        r += w_reads(lambda t, ks: ('a', zw(st & 1, t, ks)), 18, 128, 'nat', slot * 16384)
        return r
    NS = 10
    A(f"s_waitcnt vmcnt({8*(ZR-1)+32})")
    A("s_barrier")
    ST(21)
    emit(zreads(0))
    for st in range(NS):
        later = max(0, min(st + ZR - 1, NS - 1) - (st + 1)) * 8
        if st + 1 <= ZR - 1: later += 32
        if st + 1 < NS:
            A(f"s_waitcnt vmcnt({later}) lgkmcnt(0)")
            A("s_barrier")
        else:
            A("s_waitcnt lgkmcnt(0)")
        fill = []
        if st + ZR < NS: fill += z_dma(st + ZR)
        if st + 1 < NS: fill += zreads(st + 1)
        mfl = [mfma16(v(zacc(mt, nt), 4), a(zw(st & 1, nt, ks), 4), a(zx(st & 1, mt, ks), 4))
               for mt in range(4) for nt in range(4) for ks in range(2)]
        interleave(A, mfl, fill, 0, 28)
    ST(22)
    A(f"s_mov_b32 s28, {fbits(GELU_C1)}")
    A(f"v_mov_b32 v27, {fbits(GELU_C0)}")
    for b in range(0, 64, 8):
        rs = [64 + b + i for i in range(8)]
        ts = [128 + i for i in range(8)]
        for r, t in zip(rs, ts): A(f"v_mul_f32 v{t}, v{r}, v{r}")
        for r, t in zip(rs, ts): A(f"v_fma_f32 v{t}, v{t}, s28, v27")
        for r, t in zip(rs, ts): A(f"v_mul_f32 v{t}, v{t}, v{r}")
        for r, t in zip(rs, ts): A(f"v_exp_f32 v{t}, v{t}")
        for r, t in zip(rs, ts): A(f"v_add_f32 v{t}, 1.0, v{t}")
        for r, t in zip(rs, ts): A(f"v_rcp_f32 v{t}, v{t}")
        for r, t in zip(rs, ts): A(f"v_mul_f32 v{r}, v{r}, v{t}")
        for i in range(4): A(f"v_cvt_pk_bf16_f32 v{64+b+i}, v{64+b+2*i}, v{64+b+2*i+1}")
    A("""
    v_and_b32 v1, 15, v0
    v_mul_u32_u24 v1, 1728, v1
    v_bfe_u32 v2, v0, 4, 1
    v_lshl_add_u32 v1, v2, 5, v1
    v_bfe_u32 v2, v0, 5, 1
    v_lshl_add_u32 v28, v2, 4, v1
    s_lshl_b32 s30, s42, 3
    s_lshl_b32 s31, s21, 2
    s_add_u32 s30, s30, s31
    s_lshl_b32 s31, s43, 2
    s_lshl_b32 s32, s22, 1
    s_add_u32 s31, s31, s32
    """)
    for q in range(2):
        A(f"s_add_u32 s32, s31, {q}")
        A("s_cmp_ge_u32 s32, 54")
        A(f"s_cbranch_scc1 {name}_end")
        A("s_cmp_ge_u32 s32, 27")
        A(f"s_cbranch_scc1 {name}_zs2_{q}")
        A.label(f"{name}_zs1_{q}")
        A("s_mul_i32 s33, s30, 27")
        A("s_add_u32 s33, s33, s32")
        A("s_lshl_b32 s33, s33, 10")
        for mt in range(4):
            if mt: A(f"s_add_u32 s33, s33, {27*1024}")
            A(f"buffer_store_dwordx4 {v(zacc(mt, 2*q), 4)}, v26, s[16:19], s33 offen")
        A(f"s_branch {name}_zs3_{q}")
        A.label(f"{name}_zs2_{q}")
        A(f"s_mul_i32 s33, s30, {16*1728}")
        A("s_sub_u32 s32, s32, 27")
        A("s_lshl_b32 s32, s32, 6")
        A("s_add_u32 s33, s33, s32")
        for mt in range(4):
            r = zacc(mt, 2 * q)
            A(f"v_permlane16_swap_b32 v{r}, v{r+2}")
            A(f"v_permlane16_swap_b32 v{r+1}, v{r+3}")
            if mt: A(f"s_add_u32 s33, s33, {16*1728}")
            A(f"buffer_store_dwordx4 {v(r, 4)}, v28, s[44:47], s33 offen")
        A.label(f"{name}_zs3_{q}")
    A(f"{name}_end:")
    ST(23)
    if ST.on: A("s_waitcnt vmcnt(0)")
    ST(24)
    ST.dump(6, 7, "s20")
    A("s_endpgm")
    A.fix_blocks()
    return f"; @launch kernel={name} grid=(256,1,1) block=(256,1,1) lds=131072", kernel_wrap(name, A.text(), 480, sgpr=102, accum=256), A

if __name__ == '__main__':
    h, t, A = k1()
    n = "k1_kvz_kernel"
    for var in "kv":
        for p in A.check([None, f"{n}_{var}", f"{n}_{var}_zpro", f"{n}_{var}_epi", f"{n}_z", f"{n}_z2", f"{n}_zs1_0", f"{n}_zs3_0", f"{n}_zs2_1"], var)[:20]: print(p)
```

```python
from gemm import *
import math

QSCALE = math.log2(math.e) / math.sqrt(128.0)
THRESH = 2.0 ** 40
R = 8

V_L16 = 4
V_RD = 5
V_WD = 6
V_WR = 10
V_T = 18
V_L = 36
V_TS = 40
V_NM = 48
V_P = 64
V_S = 80
V_O = 128
A_Q = 0
A_K = 64
A_V = 96
S_MASK = 48

def k2(name="k2_attn_kernel"):
    A = Asm()
    ST = Stamper(A, os.environ.get("STAMP") == "k2")
    A(f"""
    s_cmp_ge_u32 s2, 256
    s_cbranch_scc1 {name}_end
    s_load_dwordx2 s[4:5], s[0:1], {A_WQ}
    s_load_dwordx2 s[6:7], s[0:1], {D_WS}
    v_lshrrev_b32 v1, 6, v0
    v_readfirstlane_b32 s20, v1           ; wave
    s_and_b32 s21, s2, 7
    s_lshl_b32 s21, s21, 2
    s_bfe_u32 s22, s2, 0x20003
    s_add_u32 s21, s21, s22               ; head
    s_lshr_b32 s22, s2, 5                 ; i
    s_sub_u32 s23, 15, s22                ; qB
    v_and_b32 v{V_L16}, 63, v0
    v_lshlrev_b32 v{V_L16}, 4, v{V_L16}
    ; z2 lane offset -> v2
    v_lshrrev_b32 v1, 5, v0
    v_mul_u32_u24 v1, 1728, v1
    v_and_b32 v3, 31, v0
    v_lshl_add_u32 v34, v3, 4, v1
    v_cmp_gt_u32 vcc, 27, v3
    v_mov_b32 v1, 0x40000000
    v_cndmask_b32 v34, v1, v34, vcc
    v_cndmask_b32 v35, 0, 1.0, vcc
    s_mul_i32 s24, s2, {8*1728}
    """)
    ST()
    setup_w_dma(A, V_WD, 8192, 128, 'nat')
    A(f"""
    s_lshl_b32 s25, s21, 8
    s_sub_u32 s26, {640*8192}, s25
    s_lshl_b32 s27, s21, 20
    s_add_u32 s27, s27, {WS_KV}
    s_lshl_b32 s28, s20, 12
    s_lshl_b32 s29, s20, 17               ; w*16 rows*8192
    s_lshl_b32 s30, s23, 3
    s_lshl_b32 s31, s20, 1
    s_add_u32 s30, s30, s31               ; first B tile
    s_lshl_b32 s32, s22, 3
    s_add_u32 s31, s32, s31               ; first A tile
    s_mul_i32 s32, s30, 20480
    s_mul_i32 s33, s31, 20480
    s_waitcnt lgkmcnt(0)
    """)
    srd(A, 8, 4, 5, "s25", "s26")
    srd(A, 12, 6, 7, WS_XN, SZ_XN)
    srd(A, 16, 6, 7, "s27", MB)
    srd(A, 40, 6, 7, WS_Z2, SZ_Z)
    srd(A, 44, 6, 7, WS_Z2N, SZ_Z)
    vm = VM()
    ZD = 64
    for j in range(4):
        A(f"buffer_load_dwordx4 {v(ZD+4*j,4)}, v34, s[40:43], s24 offen offset:{j*432}")
    vm.add('z2', 4)
    WB = 98304
    def wdma(st):
        vm.add(('w', st), 4)
        return dma_group(("s28", WB + (st & 3) * 16384), ("s29", st * 64 * 8192), 8, [V_WD + k for k in range(4)], "s34")
    xreg = lambda st, qt, ks: 128 + (st & 3) * 32 + (qt * 2 + ks) * 4
    def xload(st):
        out = []
        for qt in range(4):
            base = "s32" if qt < 2 else "s33"
            o = (qt & 1) * 20480 + st * 2048
            out.append([f"s_add_u32 s35, {base}, {o}", f"buffer_load_dwordx4 {a(xreg(st, qt, 0),4)}, v{V_L16}, s[12:15], s35 offen"])
            out.append(f"buffer_load_dwordx4 {a(xreg(st, qt, 1),4)}, v{V_L16}, s[12:15], s35 offen offset:1024")
        vm.add(('x', st), 8)
        return out
    for st in range(3):
        emit(A, wdma(st)); emit(A, xload(st))
    emit(A, wdma(3))
    A(f"s_mov_b32 s34, {WB}")
    setup_w_read(A, V_WR, 128, 'nat', "s34", "0", NT=8)
    A("v_and_b32 v1, 15, v0")
    A("v_bfe_u32 v2, v0, 4, 2")
    A("v_lshlrev_b32 v2, 2, v2")
    for r in range(4):
        A(f"v_add_u32 v3, {r}, v2")
        A(f"v_cmp_le_u32 s[{S_MASK+2*r}:{S_MASK+2*r+1}], v3, v1")
    ST()
    A(f"s_waitcnt vmcnt({vm.count('z2')})")
    def red(A, r, t):
        for m in ("quad_perm:[1,0,3,2]", "quad_perm:[2,3,0,1]", "row_half_mirror", "row_mirror"):
            A(f"v_add_f32_dpp v{r}, v{r}, v{r} {m} row_mask:0xf bank_mask:0xf")
        swap_reduce(A, "v_add_f32", r, t, 16)
    layernorm_regs(A, ZD, 16, 80, 864, red, validmul=35)
    for j in range(4):
        A(f"buffer_store_dwordx4 {v(ZD+4*j,4)}, v34, s[44:47], s24 offen offset:{j*432}")
    vm.add('z2s', 4)
    ST()
    A(f"""
    s_lshl_b32 s36, s23, 2
    s_add_u32 s36, s36, 3                 ; top
    s_lshr_b32 s37, s20, 1
    s_add_u32 s36, s36, s37
    s_lshl_b32 s36, s36, 14
    s_add_u32 s36, s36, s28               ; + w*4096
    s_mov_b32 s37, s28
    """)
    def kvdma():
        first = [f"s_cmp_lt_u32 s36, {MB}", f"s_cselect_b32 s18, {MB}, 0", "s_cselect_b32 s38, s36, 0", "s_mov_b32 m0, s37",
                 "s_sub_u32 s36, s36, 16384"]
        ld = [f"buffer_load_dwordx4 v{V_L16}, s[16:19], s38 offen offset:{k*1024} lds" for k in range(4)]
        last = ["s_add_u32 s37, s37, 16384", f"s_and_b32 s37, s37, {R*16384-1}"]
        return [first + [ld[0]], ld[1], ld[2], [ld[3]] + last]
    wreg = lambda par, e, ks: par * 64 + (ks * 8 + e) * 4
    def wreads(st):
        return w_reads(lambda t, ks: ('a', wreg(st & 1, t, ks)), V_WR, 128, 'nat', (st & 3) * 16384, NT=8)
    A(f"s_waitcnt vmcnt({vm.count(('w', 0))})")
    A("s_barrier")
    emit(A, wreads(0))
    NS = 10
    qacc = lambda qt, e: V_O + (qt * 8 + e) * 4
    nkv = 0
    for st in range(NS):
        need = [('x', st)] + ([('w', st + 1)] if st + 1 < NS else [])
        A(f"s_waitcnt vmcnt({vm.count(*need)}) lgkmcnt(0)")
        if st + 1 < NS: A("s_barrier")
        ld = []
        if st + 4 < NS: ld += wdma(st + 4)
        if st + 3 < NS: ld += xload(st + 3)
        if st >= 4:
            ld += kvdma(); vm.add(('kv', nkv), 4); nkv += 1
        rd = wreads(st + 1) if st + 1 < NS else []
        mfl = []
        for qt in range(4):
            for e in range(8):
                for ks in range(2):
                    d = v(qacc(qt, e), 4)
                    mfl.append(mfma16(d, a(wreg(st & 1, e, ks), 4), a(xreg(st, qt, ks), 4), "0" if (st == 0 and ks == 0) else None))
        interleave(A, mfl, merge(ld, rd) if rd else ld, 0, 60)
    assert nkv == 6
    ST()
    A("s_barrier")
    emit(A, kvdma())
    A(f"s_mov_b32 s34, {fbits(QSCALE)}")
    for qt in range(4):
        for ds in range(4):
            r = qacc(qt, 2 * ds)
            for i in range(8): A(f"v_mul_f32 v{r+i}, s34, v{r+i}")
            for i in range(4): A(f"v_cvt_pk_bf16_f32 v{r+i}, v{r+2*i}, v{r+2*i+1}")
            for i in range(4): A(f"v_accvgpr_write_b32 a{A_Q + (qt*4+ds)*4 + i}, v{r+i}")
    for i in range(128): A(f"v_mov_b32 v{V_O+i}, 0")
    for i in range(4): A(f"v_mov_b32 v{V_L+i}, 0")
    A(f"s_mov_b32 s39, {(R-1)*16384}")
    A(f"s_mov_b32 s56, {fbits(THRESH)}")
    A(f"s_mov_b32 s57, 0xff800000")
    ST()

    S = lambda qt, t, r=0: V_S + qt * 8 + t * 4 + r
    def qk(qt, mode):
        out = []
        for t in range(2):
            if mode == 'first' and (qt & 1) == 0 and t == 1: continue
            for ds in range(4):
                c = None
                if ds == 0: c = "0" if mode == 'first' else v(V_NM + 4 * qt, 4)
                out.append((mfma16(v(S(qt, t), 4), a(A_K + (t * 4 + ds) * 4, 4), a(A_Q + (qt * 4 + ds) * 4, 4), c), ('k', t * 4 + ds)))
        return out
    def pv(qt):
        return [(mfma16(v(V_O + (qt * 8 + e) * 4, 4), a(A_V + e * 4, 4), v(V_P + 4 * qt, 4)), ('v', e)) for e in range(8)]
    def sm_exp(qt, n=8, tb=0):
        T = V_T + tb
        out = []
        for i in range(n):
            out.append(f"v_exp_f32 v{T+i}, v{S(qt,0)+i}")
            if i >= 2 and i % 2 == 0:
                j = i - 2
                out.append(f"v_add_f32 v{V_TS+qt}, v{T+j}, v{T+j+1}" if j == 0 else [f"v_add_f32 v{V_TS+qt}, v{V_TS+qt}, v{T+j}"])
                if j: out.append(f"v_add_f32 v{V_TS+qt}, v{V_TS+qt}, v{T+j+1}")
                out.append(f"v_cvt_pk_bf16_f32 v{V_P+4*qt+j//2}, v{T+j}, v{T+j+1}")
        j = n - 2
        out.append(f"v_add_f32 v{V_TS+qt}, v{V_TS+qt}, v{T+j}")
        out.append(f"v_add_f32 v{V_TS+qt}, v{V_TS+qt}, v{T+j+1}")
        out.append(f"v_cvt_pk_bf16_f32 v{V_P+4*qt+j//2}, v{T+j}, v{T+j+1}")
        return out
    def rowmax(qt, n, d, t):
        s0 = S(qt, 0)
        out = [f"v_max3_f32 v{d}, v{s0}, v{s0+1}, v{s0+2}"]
        if n == 4: out.append(f"v_max_f32 v{d}, v{d}, v{s0+3}")
        else:
            out += [f"v_max3_f32 v{d}, v{d}, v{s0+3}, v{s0+4}", f"v_max3_f32 v{d}, v{d}, v{s0+5}, v{s0+6}", f"v_max_f32 v{d}, v{d}, v{s0+7}"]
        for wh in (16, 32):
            out += [f"v_mov_b32 v{t}, v{d}", f"v_permlane{wh}_swap_b32 v{t}, v{d}", f"v_max_f32 v{d}, v{d}, v{t}"]
        return out
    def sm_diag(qt, tb=0):
        u = qt & 1
        n = 4 if u == 0 else 8
        T = V_T + tb
        out = [f"v_mov_b32 v{T}, s57"]
        for r in range(4):
            out.append(f"v_cndmask_b32 v{S(qt,u,r)}, v{T}, v{S(qt,u,r)}, s[{S_MASK+2*r}:{S_MASK+2*r+1}]")
        out += rowmax(qt, n, T, T + 1)
        for i in range(n): out.append(f"v_sub_f32 v{S(qt,0)+i}, v{S(qt,0)+i}, v{T}")
        for r in range(4): out.append(f"v_sub_f32 v{V_NM+4*qt+r}, 0, v{T}")
        out += sm_exp(qt, n, tb)
        if u == 0: out += [f"v_mov_b32 v{V_P+4*qt+2}, 0", f"v_mov_b32 v{V_P+4*qt+3}, 0"]
        return out
    slow = []
    def phase(tag, mf, valu, other, chk, lupd):
        lastpos = {}
        for i, (m, k) in enumerate(mf): lastpos[k] = i
        post = {}
        loose = []
        for k, ins in other.items():
            if k in lastpos: post.setdefault(lastpos[k], []).extend(ins)
            else: loose.extend(ins)
        fill = merge(valu, loose) if (valu and loose) else (valu or loose)
        n = len(mf)
        if n == 0:
            emit(A, fill)
        else:
            k = 0
            for i, (m, key) in enumerate(mf):
                A(m)
                emit(A, post.get(i, []))
                hi = len(fill) * (i + 1) // n
                emit(A, fill[k:hi]); k = hi
        if chk:
            if len(chk) == 1: A(f"v_cmp_lt_f32 vcc, s56, v{V_TS+chk[0]}")
            else:
                A(f"v_max_f32 v{V_T}, v{V_TS+chk[0]}, v{V_TS+chk[1]}")
                A(f"v_cmp_lt_f32 vcc, s56, v{V_T}")
            A(f"s_cbranch_vccnz {name}_slow_{tag}")
            A.label(f"{name}_ret_{tag}")
            slow.append((tag, chk))
        for qt in lupd: A(f"v_add_f32 v{V_L+qt}, v{V_L+qt}, v{V_TS+qt}")
    def top():
        A(f"s_waitcnt vmcnt({4*(R-2)}) lgkmcnt(0)")
        A("s_barrier")
        A("s_add_u32 s39, s39, 16384")
        A(f"s_and_b32 s39, s39, {R*16384-1}")
    def iteration(tag, modes):
        top()
        A(f"v_add_u32 v{V_RD}, s39, v{V_L16}")
        kr = {('k', j): [f"ds_read_b128 {a(A_K+4*j,4)}, v{V_RD} offset:{j*1024}"] for j in range(8)}
        vr = {('v', e): [f"ds_read_b128 {a(A_V+4*e,4)}, v{V_RD} offset:{8192+e*1024}"] for e in range(8)}
        mq, mp, valu, chk, lup = [], [], [], [], []
        for st_, md in enumerate(modes):
            q0, q1 = 2 * st_, 2 * st_ + 1
            if md == 'steady':
                mq += qk(q1, 'n'); mp += pv(q1); valu += sm_exp(q0, 8, 8 * st_); chk.append(q0); lup.append(q0)
            elif md == 'diag':
                mq += qk(q1, 'first'); valu += sm_diag(q0, 8 * st_); lup.append(q0)
        other = dict(kr)
        if modes[0] != 'pre': other.update(vr)
        phase(tag + "1", mq + mp, valu, other, chk, lup)
        mq, mp, valu, chk, lup = [], [], [], [], []
        for st_, md in enumerate(modes):
            q0, q1 = 2 * st_, 2 * st_ + 1
            if md == 'steady':
                mq += qk(q0, 'n'); mp += pv(q0); valu += sm_exp(q1, 8, 8 * st_); chk.append(q1); lup.append(q1)
            elif md == 'diag':
                mq += qk(q0, 'n'); mp += pv(q0); valu += sm_diag(q1, 8 * st_); lup.append(q1)
            elif md == 'pre':
                mq += qk(q0, 'first')
        A("s_waitcnt lgkmcnt(%d)" % (8 if modes[0] == 'steady' else 0))
        mfl = mq + mp
        if mp: mfl[len(mq)] = ("s_waitcnt lgkmcnt(0)\n" + mfl[len(mq)][0], mfl[len(mq)][1])
        phase(tag + "2", mfl, valu, {'dma': kvdma()}, chk, lup)

    A("s_sub_u32 s58, 3, s20")
    A.label(f"{name}_idle")
    A("s_cmp_eq_u32 s58, 0")
    A(f"s_cbranch_scc1 {name}_preB")
    A.label(f"{name}_idle_b")
    top()
    emit(A, kvdma())
    A("s_sub_u32 s58, s58, 1")
    A(f"s_branch {name}_idle")
    A.label(f"{name}_preB")
    iteration("preB", ['pre', 'off'])
    iteration("diagB", ['diag', 'off'])
    A("s_lshl_b32 s58, s22, 3")
    A("s_sub_u32 s58, 58, s58")
    ST()
    A.label(f"{name}_loopB")
    iteration("loopB", ['steady', 'off'])
    A("s_sub_u32 s58, s58, 1")
    A("s_cmp_lg_u32 s58, 0")
    A(f"s_cbranch_scc1 {name}_loopB")
    A.label(f"{name}_preA")
    ST()
    iteration("preA", ['steady', 'pre'])
    iteration("diagA", ['steady', 'diag'])
    A("s_lshl_b32 s58, s22, 2")
    A("s_add_u32 s58, s58, s20")
    A("s_cmp_eq_u32 s58, 0")
    A(f"s_cbranch_scc1 {name}_drain")
    A.label(f"{name}_loopAB")
    iteration("loopAB", ['steady', 'steady'])
    A("s_sub_u32 s58, s58, 1")
    A("s_cmp_lg_u32 s58, 0")
    A(f"s_cbranch_scc1 {name}_loopAB")
    A.label(f"{name}_drain")
    ST()
    for m, k in pv(1) + pv(3): A(m)
    srd(A, 40, 6, 7, WS_CTX, SZ_CTX)
    for qt in (0, 2, 1, 3):
        l = V_L + qt
        swap_reduce(A, "v_add_f32", l, V_T, 16)
        swap_reduce(A, "v_add_f32", l, V_T, 32)
        A(f"v_rcp_f32 v{l}, v{l}")
        base = "s30" if qt < 2 else "s31"
        A(f"s_add_u32 s34, {base}, {qt&1}")
        A("s_lshl_b32 s34, s34, 17")
        A("s_lshl_b32 s35, s21, 12")
        A("s_add_u32 s34, s34, s35")
        for ds in range(4):
            r = V_O + (qt * 8 + 2 * ds) * 4
            for i in range(8): A(f"v_mul_f32 v{r+i}, v{r+i}, v{l}")
            for i in range(4): A(f"v_cvt_pk_bf16_f32 v{r+i}, v{r+2*i}, v{r+2*i+1}")
            A(f"buffer_store_dwordx4 {v(r,4)}, v{V_L16}, s[40:43], s34 offen offset:{ds*1024}")
    A("s_waitcnt vmcnt(16)")
    ST()
    if ST.on: A("s_waitcnt vmcnt(0)")
    ST()
    ST.dump(6, 7, "s20")
    A(f"{name}_end:")
    A("s_endpgm")
    for tag, qts in slow:
        A.label(f"{name}_slow_{tag}")
        A("s_nop 7")
        for qt in qts:
            d, t = V_T, V_T + 1
            emit(A, rowmax(qt, 8, d, t))
            A(f"v_max_f32 v{d}, 0, v{d}")
            for i in range(8): A(f"v_sub_f32 v{S(qt,0)+i}, v{S(qt,0)+i}, v{d}")
            for r in range(4): A(f"v_sub_f32 v{V_NM+4*qt+r}, v{V_NM+4*qt+r}, v{d}")
            A(f"v_exp_f32 v{t}, -v{d}")
            A(f"v_mul_f32 v{V_L+qt}, v{V_L+qt}, v{t}")
            for i in range(32): A(f"v_mul_f32 v{V_O+qt*32+i}, v{V_O+qt*32+i}, v{t}")
            emit(A, sm_exp(qt, 8, 0))
        A("s_nop 7")
        A(f"s_branch {name}_ret_{tag}")
    A.fix_blocks()
    return f"; @launch kernel={name} grid=(256,1,1) block=(256,1,1) lds=163840", kernel_wrap(name, A.text(), 512, sgpr=102, accum=256), A

if __name__ == '__main__':
    h, t, A = k2()
    n = "k2_attn_kernel"
    names = [l for l, b in A.blocks]
    def span(a_, b_):
        return names[names.index(a_):names.index(b_)]
    lb = span(f"{n}_loopB", f"{n}_preA"); lab = span(f"{n}_loopAB", f"{n}_drain")
    tr = span(None, f"{n}_loopB") + lb + lb + span(f"{n}_preA", f"{n}_loopAB") + lab + lab + [f"{n}_drain"]
    for p in A.check(tr)[:30]: print(p)
    tr = span(None, f"{n}_loopB") + lb + span(f"{n}_preA", f"{n}_loopAB") + [f"{n}_drain"]
    for p in A.check(tr)[:30]: print(p)
    for l, b in A.blocks: print(l, len(b))
```

```python
from gemm import *

def k3(name="k3_go_kernel"):
    A = Asm()
    ST = Stamper(A, os.environ.get("STAMP") == "k3")
    XS = 16384
    WBASE = 4 * XS
    A(f"""
    s_lshr_b32 s24, s2, 3                 ; j
    s_cmp_ge_u32 s24, 30
    s_cbranch_scc1 {name}_end
    s_load_dwordx2 s[4:5], s[0:1], {A_WO}
    s_load_dwordx2 s[6:7], s[0:1], {D_WS}
    s_load_dwordx4 s[36:39], s[0:1], {B_WSP}
    v_lshrrev_b32 v1, 6, v0
    v_readfirstlane_b32 s20, v1
    s_and_b32 s23, s2, 7                  ; x
    v_and_b32 v26, 63, v0
    v_lshlrev_b32 v26, 4, v26
    s_lshr_b32 s21, s20, 1                ; wm
    s_and_b32 s22, s20, 1                 ; wn
    s_lshl_b32 s25, s20, 12
    """)
    ST(0)
    A("s_cmp_ge_u32 s24, 16")
    A(f"s_cbranch_scc1 {name}_g")
    ACC = 64
    for var in ("o", "g"):
        A.label(f"{name}_{var}")
        if var == "o":
            BN, NT, order, wpitch, xstep = 160, 5, 'perm', 1280, 2048
            A(f"""
            s_and_b32 s30, s23, 1                 ; split
            s_lshr_b32 s31, s23, 1
            s_lshl_b32 s31, s31, 2
            s_lshr_b32 s32, s24, 2
            s_add_u32 s31, s31, s32               ; mtile
            s_and_b32 s32, s24, 3                 ; ntile
            s_lshl_b32 s33, s31, 20
            s_lshl_b32 s34, s30, 16
            s_add_u32 s33, s33, s34
            s_add_u32 s33, s33, {WS_CTX}
            s_sub_u32 s40, {MB}, s34
            s_mul_i32 s34, s30, {2048*1280}
            s_mul_i32 s35, s32, 320
            s_add_u32 s34, s34, s35
            s_sub_u32 s35, {4096*1280}, s34
            s_lshl_b32 s26, s20, 18
            s_mul_i32 s27, s20, {16*1280}
            s_mul_i32 s29, s20, 5120
            """)
            setup_xfrag_dma(A, 4, 131072)
            xv = [4, 4, 5, 5]
        else:
            BN, NT, order, wpitch, xstep = 128, 4, 'nat', 1728, 128
            A(f"""
            s_sub_u32 s32, s24, 16
            s_and_b32 s31, s32, 1
            s_lshl_b32 s33, s23, 1
            s_add_u32 s31, s31, s33               ; mtile
            s_lshr_b32 s32, s32, 1                ; ntile
            s_lshl_b32 s33, s31, 19
            s_lshl_b32 s34, s32, 8
            s_sub_u32 s35, {SZ_Z}, s34
            s_add_u32 s34, s34, {WS_Z2N}
            s_lshl_b32 s26, s20, 17               ; w*32 rows*4096
            s_mul_i32 s27, s20, {16*1728}
            s_lshl_b32 s29, s20, 12
            """)
            setup_xrow_dma(A, 4, 4096)
            xv = [4, 5, 6, 7]
        WSL = 64 * BN * 2
        nw = setup_w_dma(A, 8, wpitch, BN, order)
        A(f"s_add_u32 s29, s29, {WBASE}")
        A("s_waitcnt lgkmcnt(0)")
        if var == "o":
            srd(A, 8, 6, 7, "s33", "s40")
            srd(A, 12, 4, 5, "s34", "s35")
        else:
            srd(A, 8, 36, 37, "s33", 128 * 4096)
            srd(A, 12, 6, 7, "s34", "s35")
        ND = 4 + nw
        def dma(slot):
            x = [[f"s_add_u32 m0, s25, {slot*XS}", f"buffer_load_dwordx4 v{xv[0]}, s[8:11], s26 offen lds"]]
            x += [f"buffer_load_dwordx4 v{xv[k]}, s[8:11], s26 offen offset:{k*1024} lds" for k in (1, 2)]
            x += [[f"buffer_load_dwordx4 v{xv[3]}, s[8:11], s26 offen offset:3072 lds", f"s_add_u32 s26, s26, {xstep}"]]
            w = []
            for k in range(nw):
                ins = [f"buffer_load_dwordx4 v{8+k}, s[12:15], s27 offen offset:{(k&3)*1024} lds"]
                if k & 3 == 0: ins = [f"s_add_u32 m0, s29, {slot*WSL + k*1024}"] + ins
                if k == nw - 1: ins = ins + [f"s_add_u32 s27, s27, {64*wpitch}"]
                w.append(ins)
            return x + w
        for st in range(4): emit(A, dma(st))
        ST(1)
        if var == "o":
            A("s_lshl_b32 s28, s21, 13")
            A("v_add_u32 v16, s28, v26")
        else:
            A("s_lshl_b32 s28, s21, 13")
            setup_xrow_read(A, 16, "s28")
        A(f"s_mov_b32 s28, {WBASE}")
        A(f"s_mul_i32 s41, s22, {NT}")
        setup_w_read(A, 18, BN, order, "s28", "s41", NT=NT)
        for t in range(NT): A(f"v_add_u32 v{28+t}, {2*WSL}, v{18+t}")
        acc = lambda mt, nt: ACC + (mt * NT + nt) * 4
        for i in range(16 * NT): A(f"v_mov_b32 v{ACC+i}, 0")
        xr = lambda par, mt, ks: par * 32 + (mt * 2 + ks) * 4
        wr = lambda par, nt, ks: 64 + par * 40 + (ks * NT + nt) * 4
        def reads(st):
            slot = st & 3
            if var == "o":
                r = [f"ds_read_b128 {a(xr(st&1, mt, ks), 4)}, v16 offset:{slot*XS + mt*2048 + ks*1024}" for mt in range(4) for ks in range(2)]
            else:
                r = [f"ds_read_b128 {a(xr(st&1, mt, ks), 4)}, v{16+ks} offset:{slot*XS + mt*2048}" for mt in range(4) for ks in range(2)]
            w = w_reads(lambda t, ks: ('a', wr(st & 1, t, ks)), 18 if slot < 2 else 28, BN, order, (slot & 1) * WSL, NT=NT)
            return merge(r, w)
        def stage(st, wait, ld, rd=True):
            if wait is None: A("s_waitcnt lgkmcnt(0)")
            else:
                A(f"s_waitcnt vmcnt({wait}) lgkmcnt(0)")
                A("s_barrier")
            mfl = [mfma16(v(acc(mt, nt), 4), a(wr(st & 1, nt, ks), 4), a(xr(st & 1, mt, ks), 4))
                   for mt in range(4) for nt in range(NT) for ks in range(2)]
            r = reads(st + 1) if rd else []
            fill = merge(ld, r) if (ld and r) else (ld or r)
            interleave(A, mfl, fill, 0, len(mfl) - 3)
        A(f"s_waitcnt vmcnt({3*ND})")
        A("s_barrier")
        ST(2)
        emit(A, reads(0))
        A("s_mov_b32 s42, 7")
        A.label(f"{name}_{var}_loop")
        for st in range(4): stage(st, 2 * ND, dma(st))
        A("s_sub_u32 s42, s42, 1")
        A("s_cmp_lg_u32 s42, 0")
        A(f"s_cbranch_scc1 {name}_{var}_loop")
        A.label(f"{name}_{var}_tail")
        ST(3)
        if var == "o":
            stage(0, 2 * ND, []); stage(1, ND, []); stage(2, 0, []); stage(3, None, [], rd=False)
            ST(4)
            srd(A, 16, 6, 7, WS_P, SZ_P)
            A(f"""
            s_lshl_b32 s33, s30, 7
            s_lshl_b32 s34, s31, 3
            s_add_u32 s33, s33, s34
            s_lshl_b32 s34, s21, 2
            s_add_u32 s33, s33, s34
            s_mul_i32 s33, s33, 40
            s_mul_i32 s34, s32, 10
            s_add_u32 s33, s33, s34
            s_add_u32 s33, s33, s41
            s_lshl_b32 s33, s33, 10
            """)
            for mt in range(4):
                A(f"s_add_u32 s34, s33, {mt*40960}")
                A(f"s_add_u32 s35, s33, {mt*40960+4096}")
                for nt in range(5):
                    A(f"buffer_store_dwordx4 {v(acc(mt, nt), 4)}, v26, s[16:19], {'s34' if nt < 4 else 's35'} offen offset:{(nt&3)*1024}")
            A(f"s_branch {name}_end")
        else:
            pre = Asm()
            srd(pre, 16, 6, 7, WS_Z1, SZ_Z)
            srd(pre, 44, 38, 39, 0, 4096)
            pre(f"""
            s_lshl_b32 s33, s31, 3
            s_lshl_b32 s34, s21, 2
            s_add_u32 s33, s33, s34
            s_lshl_b32 s43, s33, 5
            s_mul_i32 s33, s33, 27
            s_lshl_b32 s34, s32, 2
            s_lshl_b32 s35, s22, 1
            s_add_u32 s34, s34, s35
            s_add_u32 s33, s33, s34
            s_lshl_b32 s33, s33, 10
            s_cmp_ge_u32 s34, 26
            s_cselect_b32 s40, 0, 1024
            v_and_b32 v1, 15, v0
            v_lshlrev_b32 v1, 1, v1
            """)
            ld = [[x.text for x in pre.blocks[0][1]]]
            for mt in range(4):
                ld.append(f"buffer_load_ushort v{150+mt}, v1, s[44:47], s43 offen offset:{mt*32}")
            for mt in range(4):
                ld.append([f"s_add_u32 s35, s33, {mt*27*1024}", f"buffer_load_dwordx4 {v(160+mt*8, 4)}, v26, s[16:19], s35 offen"])
                ld.append([f"s_add_u32 s35, s35, s40", f"buffer_load_dwordx4 {v(164+mt*8, 4)}, v26, s[16:19], s35 offen"])
            stage(0, 2 * ND, ld); stage(1, ND + 12, []); stage(2, 12, []); stage(3, None, [], rd=False)
            ST(4)
            srd(A, 16, 6, 7, WS_U, SZ_Z)
            A("s_waitcnt vmcnt(0)")
            for mt in range(4): A(f"v_lshlrev_b32 v{150+mt}, 16, v{150+mt}")
            for q in range(2):
                if q == 1:
                    A("s_cmp_eq_u32 s40, 0")
                    A(f"s_cbranch_scc1 {name}_end")
                    A.label(f"{name}_g_q1")
                for mt in range(4):
                    r = acc(mt, 2 * q); z = 160 + mt * 8 + q * 4
                    for i in range(8): A(f"v_add_f32 v{r+i}, v{r+i}, v{150+mt}")
                    for i in range(4):
                        A(f"v_lshlrev_b32 v{32+2*i}, 16, v{z+i}")
                        A(f"v_and_b32 v{33+2*i}, 0xffff0000, v{z+i}")
                    for i in range(8): A(f"v_mul_f32 v{r+i}, v{r+i}, v{32+i}")
                    for i in range(4): A(f"v_cvt_pk_bf16_f32 v{r+i}, v{r+2*i}, v{r+2*i+1}")
                    A(f"s_add_u32 s35, s33, {mt*27*1024 + q*1024}")
                    A(f"buffer_store_dwordx4 {v(r, 4)}, v26, s[16:19], s35 offen")
    A(f"{name}_end:")
    ST(5)
    if ST.on: A("s_waitcnt vmcnt(0)")
    ST(6)
    ST.dump(6, 7, "s20")
    A("s_endpgm")
    A.fix_blocks()
    return f"; @launch kernel={name} grid=(240,1,1) block=(256,1,1) lds=147456", kernel_wrap(name, A.text(), 400, sgpr=102, accum=256), A

if __name__ == '__main__':
    h, t, A = k3()
    n = "k3_go_kernel"
    for p in A.check([None, f"{n}_o", f"{n}_o_loop", f"{n}_o_loop", f"{n}_o_tail"], "o")[:20]: print(p)
    for p in A.check([None, f"{n}_g", f"{n}_g_loop", f"{n}_g_loop", f"{n}_g_tail", f"{n}_g_q1"], "g")[:20]: print(p)
    for l, b in A.blocks: print(l, len(b))
```

```python
from gemm import *

def k4(name="k4_out_kernel"):
    A = Asm()
    ST = Stamper(A, os.environ.get("STAMP") == "k4")
    REG = 7 * 5120
    A(f"""
    s_cmp_ge_u32 s2, 256
    s_cbranch_scc1 {name}_end
    s_load_dwordx4 s[4:7], s[0:1], {B_WOUT}
    s_load_dwordx2 s[36:37], s[0:1], {D_WS}
    s_load_dwordx2 s[38:39], s[0:1], {A_X}
    v_lshrrev_b32 v1, 6, v0
    v_readfirstlane_b32 s20, v1
    s_and_b32 s21, s2, 7
    s_lshl_b32 s21, s21, 2
    s_bfe_u32 s22, s2, 0x20003
    s_add_u32 s21, s21, s22
    s_lshr_b32 s22, s2, 5
    v_and_b32 v1, 63, v0
    v_lshlrev_b32 v4, 4, v1
    """)
    ST(0)
    for k in range(5):
        A(f"v_add_u32 v2, {k*64}, v1")
        A(f"v_mul_u32_u24 v3, 6554, v2")
        A("v_lshrrev_b32 v3, 16, v3")
        A(f"v_mul_u32_u24 v{5+k}, 10, v3")
        A(f"v_sub_u32 v2, v2, v{5+k}")
        A(f"v_mul_u32_u24 v3, 1280, v3")
        A(f"v_lshl_add_u32 v{5+k}, v2, 4, v3")
        if k & 3: A(f"v_subrev_u32 v{5+k}, {(k&3)*1024}, v{5+k}")
    A(f"""
    s_mul_i32 s23, s22, 160
    s_sub_u32 s24, {864*1280}, s23
    s_mul_i32 s25, s20, {REG}
    s_mul_i32 s26, s20, {32*1280}         ; W soffset
    s_mul_i32 s27, s21, {4*27*1024}
    s_lshl_b32 s28, s20, 10
    s_add_u32 s27, s27, s28               ; U soffset
    s_waitcnt lgkmcnt(0)
    """)
    srd(A, 8, 4, 5, "s23", "s24")
    srd(A, 12, 36, 37, WS_U, SZ_Z)
    ureg = lambda q, tt: (q * 4 + tt) * 4
    for q in range(7):
        A(f"s_add_u32 m0, s25, {q*5120}")
        A(f"s_add_u32 s28, s26, {q*4*32*1280}")
        for k in range(4): A(f"buffer_load_dwordx4 v{5+k}, s[8:11], s28 offen offset:{k*1024} lds")
        A(f"s_add_u32 m0, s25, {q*5120+4096}")
        A(f"s_add_u32 s29, s27, {q*4096}")
        A(f"buffer_load_dwordx4 v9, s[8:11], s28 offen lds")
        for tt in range(4):
            if tt: A(f"s_add_u32 s29, s29, {27*1024}")
            A(f"buffer_load_dwordx4 {a(ureg(q, tt), 4)}, v4, s[12:15], s29 offen")
    ST(1)
    srd(A, 16, 36, 37, WS_P, SZ_P)
    srd(A, 40, 38, 39, 0, SZ_XN)
    srd(A, 44, 6, 7, 0, SZ_XN)
    A(f"""
    v_and_b32 v1, 15, v0
    v_bfe_u32 v2, v0, 4, 2
    v_lshrrev_b32 v3, 2, v1
    v_lshl_add_u32 v3, v2, 2, v3          ; row 4g + (i>>2)
    v_mul_u32_u24 v3, 160, v3
    v_and_b32 v10, 3, v1
    v_lshl_add_u32 v10, v10, 3, v3
    v_add_u32 v10, s25, v10
    v_mul_u32_u24 v11, 1280, v1
    v_lshl_add_u32 v11, v2, 3, v11
    v_add_u32 v12, s25, v4
    s_lshl_b32 s30, s21, 2
    s_add_u32 s30, s30, s20               ; t tile
    s_mul_i32 s31, s30, {16*1280}
    s_add_u32 s31, s31, s23
    s_mul_i32 s30, s30, 40
    s_mul_i32 s32, s22, 5
    s_add_u32 s30, s30, s32
    s_lshl_b32 s30, s30, 10               ; P soffset
    """)
    wreg = lambda par, nt: 128 + par * 20 + nt * 4
    acc = lambda tt, nt: 64 + (tt * 5 + nt) * 4
    PR = 16
    def reads(q):
        return [f"ds_read_b64_tr_b16 {a(wreg(q&1, nt)+2*h, 2)}, v10 offset:{q*5120 + h*16*160 + nt*32}" for nt in range(5) for h in range(2)]
    extra = []
    for sp in range(2):
        for nt in range(5):
            pre = [f"s_add_u32 s32, s30, {sp*128*40*1024 + nt*1024}"] if nt in (0, 4) else []
            extra.append(pre + [f"buffer_load_dwordx4 {v(PR+sp*20+nt*4, 4)}, v4, s[16:19], s32 offen offset:{(nt&3)*1024}"])
    for nt in range(5): extra.append(f"buffer_load_dwordx2 {v(144+2*nt, 2)}, v11, s[40:43], s31 offen offset:{nt*32}")
    A(f"s_waitcnt vmcnt({9*6+4})")
    emit(A, reads(0))
    nextra = 0
    for q in range(7):
        if q == 6:
            A("s_cmp_eq_u32 s20, 3")
            A(f"s_cbranch_scc1 {name}_red")
            A.label(f"{name}_q6")
        left = max(0, 9 * (5 - q) + 4) if q < 6 else 0
        A(f"s_waitcnt vmcnt({left + nextra}) lgkmcnt(0)")
        fill = reads(q + 1) if q < 6 else []
        if q in (1, 2):
            e = extra[:8] if q == 1 else extra[8:]
            fill = merge(fill, e); nextra += len(e)
        mfl = [mfma16(v(acc(tt, nt), 4), a(wreg(q & 1, nt), 4), a(ureg(q, tt), 4), "0" if q == 0 else None) for nt in range(5) for tt in range(4)]
        interleave(A, mfl, fill, 0, 16)
    A.label(f"{name}_red")
    ST(2)
    A("s_waitcnt vmcnt(15) lgkmcnt(0)")
    for tt in range(4):
        for nt in range(5):
            A(f"ds_write_b128 v12, {v(acc(tt, nt), 4)} offset:{(tt*5+nt)*1024}")
    A("s_mul_i32 s32, s20, 5120")
    A("v_add_u32 v13, s32, v4")
    A(f"v_add_u32 v14, {2*REG}, v13")
    A("s_waitcnt vmcnt(0)")
    for nt in range(5):
        for r in range(4): A(f"v_add_f32 v{PR+nt*4+r}, v{PR+nt*4+r}, v{PR+20+nt*4+r}")
        A(f"v_lshlrev_b32 v{PR+20+nt*4}, 16, v{144+2*nt}")
        A(f"v_and_b32 v{PR+21+nt*4}, 0xffff0000, v{144+2*nt}")
        A(f"v_lshlrev_b32 v{PR+22+nt*4}, 16, v{145+2*nt}")
        A(f"v_and_b32 v{PR+23+nt*4}, 0xffff0000, v{145+2*nt}")
        for r in range(4): A(f"v_add_f32 v{PR+nt*4+r}, v{PR+nt*4+r}, v{PR+20+nt*4+r}")
    A("s_waitcnt lgkmcnt(0)")
    A("s_barrier")
    for nt in range(5):
        for ww in range(4):
            A(f"ds_read_b128 {v(acc(ww, nt), 4)}, v{13 + (ww >> 1)} offset:{(ww&1)*REG + nt*1024}")
    for nt in range(5):
        A(f"s_waitcnt lgkmcnt({min(15, 4*(4-nt))})")
        for r in range(4):
            A(f"v_add_f32 v{acc(0,nt)+r}, v{acc(0,nt)+r}, v{acc(1,nt)+r}")
            A(f"v_add_f32 v{acc(2,nt)+r}, v{acc(2,nt)+r}, v{acc(3,nt)+r}")
        for r in range(4):
            A(f"v_add_f32 v{PR+nt*4+r}, v{PR+nt*4+r}, v{acc(0,nt)+r}")
        for r in range(4):
            A(f"v_add_f32 v{PR+nt*4+r}, v{PR+nt*4+r}, v{acc(2,nt)+r}")
        A(f"v_cvt_pk_bf16_f32 v{PR+nt*4}, v{PR+nt*4}, v{PR+nt*4+1}")
        A(f"v_cvt_pk_bf16_f32 v{PR+nt*4+1}, v{PR+nt*4+2}, v{PR+nt*4+3}")
        A(f"buffer_store_dwordx2 {v(PR+nt*4, 2)}, v11, s[44:47], s31 offen offset:{nt*32}")
    ST(3)
    if ST.on: A("s_waitcnt vmcnt(0)")
    ST(4)
    ST.dump(36, 37, "s20")
    A(f"{name}_end:")
    A("s_endpgm")
    A.fix_blocks()
    return f"; @launch kernel={name} grid=(256,1,1) block=(256,1,1) lds={4*REG}", kernel_wrap(name, A.text(), 256 + 168, sgpr=102, accum=256), A

if __name__ == '__main__':
    h, t, A = k4()
    n = "k4_out_kernel"
    for p in A.check([None, f"{n}_q6", f"{n}_red"], "a")[:20]: print(p)
    for p in A.check([None, f"{n}_red"], "b")[:20]: print(p)
    for l, b in A.blocks: print(l, len(b))
```

```python
import sys
from common import *
from k0 import k0
from k1 import k1

def build(kernels, path):
    hdr = open('parallel_sum__compressed_kv_cla__mixer_gmlp__prompt.s.ref').read().split('\n')
    hdr = [l for l in hdr if l.startswith(';') and '@launch' not in l and 'Override' not in l and 'grid=ceil' not in l]
    txt = '\n'.join(hdr) + '\n' + '\n'.join(k[0] for k in kernels) + '\n.amdgcn_target "amdgcn-amd-amdhsa--gfx950"\n' + ''.join(k[1] for k in kernels)
    open(path, 'w').write(txt)
    for k in kernels:
        print(k[0], 'instrs:', k[2].count())

if __name__ == '__main__':
    ks = [k0(), k1()]
    try:
        from k2 import k2
        ks.append(k2())
        from k3 import k3
        ks.append(k3())
        from k4 import k4
        ks.append(k4())
    except ImportError as e:
        print("partial:", e)
    build(ks, sys.argv[1] if len(sys.argv) > 1 else 'out.s')
```

```python
import re

def v(i, n=1):
    return f"v{i}" if n == 1 else f"v[{i}:{i+n-1}]"
def a(i, n=1):
    return f"a{i}" if n == 1 else f"a[{i}:{i+n-1}]"
def s(i, n=1):
    return f"s{i}" if n == 1 else f"s[{i}:{i+n-1}]"

_REG = re.compile(r'^(-?)(?:abs\()?\|?([vas])(?:(\d+)|\[(\d+):(\d+)\])\|?\)?$')

def regs_of(op):
    op = op.strip()
    if op in ('vcc',):
        return {('s', 106), ('s', 107)}
    if op == 'vcc_lo': return {('s', 106)}
    if op == 'vcc_hi': return {('s', 107)}
    if op == 'm0': return {('s', 124)}
    if op == 'exec': return {('s', 126), ('s', 127)}
    if op == 'exec_lo': return {('s', 126)}
    if op == 'exec_hi': return {('s', 127)}
    m = _REG.match(op)
    if not m:
        return set()
    k = m.group(2)
    if m.group(3) is not None:
        return {(k, int(m.group(3)))}
    return {(k, i) for i in range(int(m.group(4)), int(m.group(5)) + 1)}

TRANS = ('v_exp_f32', 'v_log_f32', 'v_rcp_f32', 'v_rsq_f32', 'v_sqrt_f32', 'v_sin_f32', 'v_cos_f32', 'v_rcp_iflag_f32')

class Ins:
    __slots__ = ('text', 'mn', 'ops', 'mods', 'rd', 'wr', 'kind', 'passes', 'A', 'B', 'C', 'D', 'lds_dma', 'data', 'tag', 'nop')
    def __init__(self, text):
        self.text = text
        t = text.split(';')[0].strip()
        parts = t.split(None, 1)
        self.mn = parts[0]
        rest = parts[1] if len(parts) > 1 else ''
        ops = []
        cur = ''
        depth = 0
        for ch in rest:
            if ch in '[(': depth += 1
            if ch in '])': depth -= 1
            if ch == ',' and depth == 0:
                ops.append(cur.strip()); cur = ''
            else:
                cur += ch
        if cur.strip(): ops.append(cur.strip())
        mods = ''
        if ops:
            last = ops[-1].split(None, 1)
            if len(last) > 1 and not self.mn.startswith('s_waitcnt'):
                ops[-1] = last[0]; mods = last[1]
        self.ops = ops; self.mods = mods
        self.rd = set(); self.wr = set(); self.passes = 0
        self.A = self.B = self.C = self.D = set(); self.lds_dma = False; self.data = set()
        self.nop = 1
        mn = self.mn
        R = regs_of
        if mn.startswith('v_mfma'):
            self.kind = 'mfma'
            self.D = R(ops[0]); self.A = R(ops[1]); self.B = R(ops[2]); self.C = R(ops[3])
            self.wr = set(self.D); self.rd = self.A | self.B | self.C
            self.passes = 8 if '32x32x16' in mn else 4 if '16x16x32' in mn else 16
        elif mn.startswith('v_'):
            self.kind = 'valu'
            if mn.startswith('v_cmp'):
                self.wr = R(ops[0])
                if mn.startswith('v_cmpx'): self.wr |= R('exec')
                for o in ops[1:]: self.rd |= R(o)
            elif mn.startswith('v_permlane') and 'swap' in mn:
                self.wr = R(ops[0]) | R(ops[1]); self.rd = set(self.wr)
            elif mn.startswith(('v_add_co', 'v_sub_co', 'v_subrev_co', 'v_addc_co', 'v_subb_co', 'v_mad_u64_u32', 'v_div_scale')):
                self.wr = R(ops[0]) | R(ops[1])
                for o in ops[2:]: self.rd |= R(o)
            elif mn == 'v_nop':
                pass
            else:
                self.wr = R(ops[0])
                for o in ops[1:]: self.rd |= R(o)
                if mn.startswith(('v_fmac', 'v_pk_fmac', 'v_dot2c', 'v_writelane')) or 'dpp' in mn or 'row_' in mods or 'quad_perm' in mods or 'op_sel' in mods and 'cvt' not in mn and not mn.startswith('v_pk'):
                    self.rd |= R(ops[0])
                if mn.startswith('v_cndmask') and len(ops) == 3: self.rd |= R('vcc')
        elif mn.startswith('ds_'):
            self.kind = 'ds'
            if mn.startswith(('ds_read', 'ds_bpermute', 'ds_permute', 'ds_swizzle')):
                self.wr = R(ops[0])
                for o in ops[1:]: self.rd |= R(o)
            else:
                for o in ops: self.rd |= R(o)
                for o in ops[1:]: self.data |= R(o)
        elif mn.startswith('buffer_'):
            self.kind = 'vmem'
            if mn.startswith(('buffer_wbl2', 'buffer_inv')):
                pass
            elif 'lds' in mods.split():
                self.lds_dma = True
                for o in ops: self.rd |= R(o)
                self.rd |= R('m0')
            elif mn.startswith('buffer_load'):
                self.wr = R(ops[0])
                for o in ops[1:]: self.rd |= R(o)
            else:
                for o in ops: self.rd |= R(o)
                self.data = R(ops[0])
                if 'atomic' in mn and 'sc0' in mods.split(): self.wr = R(ops[0])
        elif mn.startswith('global_'):
            self.kind = 'vmem'
            if mn.startswith('global_load_lds'):
                self.lds_dma = True
                for o in ops: self.rd |= R(o)
                self.rd |= R('m0')
            elif mn.startswith('global_load'):
                self.wr = R(ops[0])
                for o in ops[1:]: self.rd |= R(o)
            elif 'atomic' in mn and 'sc0' in mods.split():
                self.wr = R(ops[0])
                for o in ops[1:]: self.rd |= R(o)
            else:
                for o in ops: self.rd |= R(o)
                self.data = R(ops[1])
        elif mn.startswith(('s_load', 's_buffer_load', 's_memtime', 's_memrealtime', 's_atomic')):
            self.kind = 'smem'
            self.wr = R(ops[0])
            for o in ops[1:]: self.rd |= R(o)
        elif mn.startswith('s_'):
            self.kind = 'salu'
            if mn == 's_nop':
                self.nop = int(ops[0], 0) + 1
            elif mn.startswith(('s_waitcnt', 's_barrier', 's_branch', 's_cbranch', 's_endpgm', 's_setprio', 's_sleep', 's_cmp', 's_bitcmp')):
                for o in ops: self.rd |= R(o)
            else:
                if ops: self.wr = R(ops[0])
                for o in ops[1:]: self.rd |= R(o)
                if 'saveexec' in mn: self.wr |= R('exec'); self.rd |= R('exec')
                if mn.startswith(('s_addk', 's_mulk', 's_cmov')): self.rd |= R(ops[0])
        else:
            raise ValueError("unknown instruction: " + text)

def _vg(rs):
    return {r for r in rs if r[0] in 'va'}
def _sg(rs):
    return {r for r in rs if r[0] == 's'}

def required_gap(p, c):
    need = 0
    if p.kind == 'mfma':
        xdl = {4: (0, 6, 8, 3), 8: (0, 10, 12, 7), 16: (0, 18, 20, 15)}[p.passes]
        if c.kind == 'mfma':
            if c.C & p.D:
                if c.C == p.D and c.passes == p.passes: need = max(need, xdl[0])
                else: need = max(need, xdl[1])
            if (c.A | c.B) & p.D: need = max(need, xdl[2])
            if (c.D & p.D) and not (c.C == p.D): need = max(need, xdl[1])
        elif c.kind in ('valu', 'ds', 'vmem'):
            if (c.rd | c.wr) & p.D: need = max(need, xdl[2])
            if c.kind == 'valu' and (c.wr & p.C): need = max(need, xdl[3])
            if c.kind in ('ds', 'vmem') and (c.wr & p.C): need = max(need, xdl[3])
    elif p.kind == 'valu':
        pw_v = _vg(p.wr); pw_s = _sg(p.wr)
        if c.kind == 'mfma':
            if c.rd & pw_v: need = max(need, 2)
            if ('s', 126) in pw_s: need = max(need, 4)
        if c.kind == 'valu':
            if c.mn.startswith('v_permlane') and (c.rd & pw_v): need = max(need, 2)
            if c.mn.startswith(('v_readlane', 'v_readfirstlane')) and (c.rd & pw_v): need = max(need, 1)
            if ('dpp' in c.mn or 'row_' in c.mods or 'quad_perm' in c.mods or 'wave_' in c.mods) and (c.rd & pw_v): need = max(need, 2)
            if p.mn.startswith(TRANS) and not c.mn.startswith(TRANS) and ((c.rd) & pw_v): need = max(need, 1)
            if pw_s & c.rd:
                need = max(need, 2)
                if c.mn.startswith(('v_readlane', 'v_writelane')): need = max(need, 4)
                if c.mn.startswith('v_div_fmas'): need = max(need, 4)
            if ('s', 126) in pw_s:
                if c.mn.startswith(('v_readlane', 'v_readfirstlane', 'v_writelane', 'v_permlane')): need = max(need, 4)
                if 'dpp' in c.mn or 'row_' in c.mods: need = max(need, 5)
            if ('op_sel' in p.mods or 'sdwa' in p.mn or 'dst_sel' in p.mods) and (c.rd & pw_v): need = max(need, 1)
        if c.kind == 'vmem' and (pw_s & c.rd): need = max(need, 5)
        if p.mn.startswith(TRANS) and c.kind in ('vmem', 'ds') and (c.rd & pw_v): need = max(need, 1)
    elif p.kind == 'vmem':
        if p.data and len(p.data) >= 3:
            if c.wr & p.data: need = max(need, 2 if c.kind == 'valu' or c.kind == 'mfma' else 1)
    elif p.kind == 'salu':
        if ('s', 124) in p.wr and (c.lds_dma or 'addtid' in c.mn): need = max(need, 1)
    return need

def check_hazards(seq, fix=False, name=''):
    out = []
    probs = []
    for c in seq:
        dist = 0
        worst = 0
        for p in reversed(out[-24:]):
            need = required_gap(p, c)
            if need > dist:
                worst = max(worst, need - dist)
                if not fix:
                    probs.append(f"{name}: hazard need {need} have {dist}: [{p.text.strip()}] -> [{c.text.strip()}]")
            dist += p.nop
            if dist >= 21: break
        if fix and worst > 0:
            while worst > 0:
                n = min(worst, 16)
                out.append(Ins(f"s_nop {n-1}"))
                worst -= n
        out.append(c)
    return out if fix else probs

_W = re.compile(r'(vmcnt|lgkmcnt|expcnt)\((\d+)\)')
def check_waits(seq, name=''):
    vm = []
    lg = []
    probs = []
    for c in seq:
        if c.mn == 's_waitcnt':
            for k, n in _W.findall(c.text.split(';')[0]):
                n = int(n)
                if k == 'vmcnt':
                    if len(vm) > n: vm = vm[len(vm) - n:] if n else []
                elif k == 'lgkmcnt':
                    if any(x.kind == 'smem' for x in lg):
                        if n == 0: lg = []
                    else:
                        if len(lg) > n: lg = lg[len(lg) - n:] if n else []
            continue
        touch = c.rd | c.wr
        for o in vm:
            if o.wr & touch:
                probs.append(f"{name}: missing vmcnt wait: [{o.text.strip()}] -> [{c.text.strip()}]")
            if o.data and False: pass
        for o in lg:
            if o.wr & touch and not (c.kind == 'ds' and o.kind == 'ds' and not (o.wr & c.rd)):
                probs.append(f"{name}: missing lgkmcnt wait: [{o.text.strip()}] -> [{c.text.strip()}]")
        if c.kind == 'vmem':
            vm.append(c)
            if len(vm) > 63: probs.append(f"{name}: more than 63 vmem outstanding at [{c.text.strip()}]")
        elif c.kind in ('ds', 'smem'):
            lg.append(c)
    return probs

class Asm:
    def __init__(self):
        self.blocks = []
        self.cur = None
        self.vm = None
        self.new_block(None)
    def new_block(self, label):
        self.cur = []
        self.blocks.append([label, self.cur])
    def label(self, name):
        self.new_block(name)
    def __call__(self, text):
        for line in text.split('\n'):
            t = line.strip()
            if not t: continue
            if t.startswith(';') or t.startswith('.'):
                self.cur.append(t); continue
            if t.endswith(':'):
                self.label(t[:-1]); continue
            ins = Ins(t)
            self.cur.append(ins)
            if self.vm is not None and ins.kind == 'vmem':
                self.vm.ops.append(t.split('; @')[1].strip() if '; @' in t else None)
    def block(self, name):
        for l, b in self.blocks:
            if l == name: return [x for x in b if isinstance(x, Ins)]
        raise KeyError(name)
    def fix_blocks(self):
        prev_tail = []
        for ent in self.blocks:
            b = ent[1]
            out = []
            hist = list(prev_tail)
            for x in b:
                if isinstance(x, str):
                    out.append(x); continue
                fixed = check_hazards(hist + [x], fix=True)
                new = fixed[len(hist):]
                out.extend(new)
                hist = (hist + new)[-24:]
            ent[1][:] = out
            prev_tail = hist
    def trace(self, names):
        seq = []
        for n in names: seq += self.block(n)
        return seq
    def check(self, names, name=''):
        seq = self.trace(names)
        return check_hazards(seq, name=name) + check_waits(seq, name=name)
    def text(self):
        out = []
        for l, b in self.blocks:
            if l: out.append(f"{l}:")
            for x in b:
                if isinstance(x, str):
                    if not x.startswith(';'): out.append(x)
                else: out.append(x.text.split(';')[0].strip())
        return '\n'.join(out) + '\n'
    def count(self):
        return sum(1 for l, b in self.blocks for x in b if isinstance(x, Ins))

def kernel_wrap(name, body, vgpr, sgpr=102, accum=None, wg_y=False):
    if accum is None: accum = (min(vgpr, 256) + 3) // 4 * 4
    txt = f""".text
.globl {name}
.p2align 8
.type {name},@function
{name}:
{body}
.section .rodata,"a"
.p2align 6
.amdhsa_kernel {name}
  .amdhsa_next_free_vgpr {vgpr}
  .amdhsa_next_free_sgpr {sgpr}
  .amdhsa_accum_offset {accum}
  .amdhsa_group_segment_fixed_size 0
  .amdhsa_kernarg_size 112
  .amdhsa_user_sgpr_count 2
  .amdhsa_user_sgpr_kernarg_segment_ptr 1
  .amdhsa_system_sgpr_workgroup_id_x 1
{'  .amdhsa_system_sgpr_workgroup_id_y 1' if wg_y else ''}
.end_amdhsa_kernel
"""
    return txt
```

```python
from asmlib import *

A_X, A_CKV, A_WQ, A_WUK, A_WUV, A_WO, B_X, B_WIN, B_WSP, B_BSP, B_WOUT, D_OUT, D_DBG, D_WS = [8 * i for i in range(14)]
MB = 1 << 20
WS_XN = 0
WS_KV = 4 * MB
WS_Z1 = 40 * MB
WS_Z2 = 44 * MB
WS_Z2N = 48 * MB
WS_CTX = 52 * MB
WS_U = 72 * MB
WS_P = 76 * MB
SZ_XN = 2048 * 640 * 2
SZ_KV = 32 * MB
SZ_Z = 2048 * 864 * 2
SZ_CTX = 16 * MB
SZ_P = 2 * 128 * 40 * 1024

def srd(A, d, base_lo, base_hi, off, size):
    if off == 0:
        A(f"s_mov_b32 s{d}, s{base_lo}")
        A(f"s_mov_b32 s{d+1}, s{base_hi}")
    else:
        A(f"s_add_u32 s{d}, s{base_lo}, {off}")
        A(f"s_addc_u32 s{d+1}, s{base_hi}, 0")
    A(f"s_mov_b32 s{d+2}, {size}")
    A(f"s_mov_b32 s{d+3}, 0x20000")

def interleave(A, mf, fill, start=0, end=None):
    n = len(mf)
    if end is None: end = n
    span = end - start
    k = 0
    for i, m in enumerate(mf):
        A(m)
        if start <= i < end:
            hi = len(fill) * (i - start + 1) // span
            while k < hi:
                f = fill[k]
                if isinstance(f, str): A(f)
                else:
                    for x in f: A(x)
                k += 1
    assert k == len(fill)

def mfma16(d, x, y, c=None):
    return f"v_mfma_f32_16x16x32_bf16 {d}, {x}, {y}, {d if c is None else c}"

def fbits(x):
    import struct
    return "0x%08x" % struct.unpack("<I", struct.pack("<f", x))[0]

def round_bf16(A, dst, src):
    A(f"v_cvt_pk_bf16_f32 {dst}, {src}, {src}")
    A(f"v_and_b32 {dst}, 0xffff0000, {dst}")

def layernorm_regs(A, data, nd, tmp, N, reduce_fn, validmul=None):
    f = tmp; s0 = tmp + 2 * nd; s1 = s0 + 1; t0 = s0 + 2; mean = s0 + 3; mb = s0 + 4; rs = s0 + 5
    for i in range(nd):
        A(f"v_lshlrev_b32 v{f+2*i}, 16, v{data+i}")
        A(f"v_and_b32 v{f+2*i+1}, 0xffff0000, v{data+i}")
    A(f"v_add_f32 v{s0}, v{f}, v{f+2}")
    A(f"v_add_f32 v{s1}, v{f+1}, v{f+3}")
    for i in range(2, nd):
        A(f"v_add_f32 v{s0}, v{s0}, v{f+2*i}")
        A(f"v_add_f32 v{s1}, v{s1}, v{f+2*i+1}")
    A(f"v_add_f32 v{s0}, v{s0}, v{s1}")
    reduce_fn(A, s0, t0)
    A(f"v_mul_f32 v{mean}, {fbits(1.0/N)}, v{s0}")
    round_bf16(A, f"v{mb}", f"v{mean}")
    A(f"v_mov_b32 v{s0}, 0")
    A(f"v_mov_b32 v{s1}, 0")
    for i in range(nd):
        A(f"v_sub_f32 v{t0}, v{f+2*i}, v{mean}")
        A(f"v_sub_f32 v{rs}, v{f+2*i+1}, v{mean}")
        A(f"v_fmac_f32 v{s0}, v{t0}, v{t0}")
        A(f"v_fmac_f32 v{s1}, v{rs}, v{rs}")
    A(f"v_add_f32 v{s0}, v{s0}, v{s1}")
    if validmul is not None:
        A(f"v_mul_f32 v{s0}, v{s0}, v{validmul}")
    reduce_fn(A, s0, t0)
    A(f"v_mul_f32 v{s0}, {fbits(1.0/N)}, v{s0}")
    round_bf16(A, f"v{s0}", f"v{s0}")
    A(f"v_add_f32 v{s0}, {fbits(1e-5)}, v{s0}")
    round_bf16(A, f"v{s0}", f"v{s0}")
    A(f"v_sqrt_f32 v{s0}, v{s0}")
    round_bf16(A, f"v{s0}", f"v{s0}")
    A(f"v_rcp_f32 v{rs}, v{s0}")
    for i in range(nd):
        A(f"v_sub_f32 v{f+2*i}, v{f+2*i}, v{mb}")
        A(f"v_sub_f32 v{f+2*i+1}, v{f+2*i+1}, v{mb}")
        A(f"v_cvt_pk_bf16_f32 v{data+i}, v{f+2*i}, v{f+2*i+1}")
        A(f"v_lshlrev_b32 v{f+2*i}, 16, v{data+i}")
        A(f"v_and_b32 v{f+2*i+1}, 0xffff0000, v{data+i}")
        A(f"v_mul_f32 v{f+2*i}, v{f+2*i}, v{rs}")
        A(f"v_mul_f32 v{f+2*i+1}, v{f+2*i+1}, v{rs}")
        A(f"v_cvt_pk_bf16_f32 v{data+i}, v{f+2*i}, v{f+2*i+1}")

def swap_reduce(A, op, r, t, which):
    A(f"v_mov_b32 v{t}, v{r}")
    A(f"v_permlane{which}_swap_b32 v{t}, v{r}")
    A(f"{op} v{r}, v{r}, v{t}")

import os
STAMP = bool(os.environ.get("STAMP"))
class Stamper:
    def __init__(self, A, on): self.A = A; self.n = 0; self.on = on and STAMP
    def __call__(self, idx=None):
        if not self.on: return
        i = self.n if idx is None else idx
        self.A("s_memtime s[96:97]" if os.environ.get("STAMPCYC") else "s_memrealtime s[96:97]")
        self.A("s_waitcnt lgkmcnt(0)")
        self.A(f"s_mov_b32 s{64+i}, s96")
        self.n = i + 1
    def dump(self, ws_lo, ws_hi, swave, nw=4):
        if not self.on: return
        A = self.A
        srd(A, 96, ws_lo, ws_hi, 200 * MB, 1 * MB)
        A(f"s_mul_i32 s100, s2, {nw}")
        A(f"s_add_u32 s100, s100, {swave}")
        A("s_lshl_b32 s100, s100, 7")
        A("v_mov_b32 v1, 0")
        for i in range(32):
            A(f"v_mov_b32 v2, s{64+i}")
            A(f"buffer_store_dword v2, v1, s[96:99], s100 offen offset:{4*i}")


def cost_of(t):
    m = t.split()[0]
    if m.startswith(TRANS): return 8
    if m.startswith('buffer_'): return 8
    return 4

def sched(A, mf, pinned, streams, budget=8):
    n = len(mf)
    c = lambda x: cost_of(x) if isinstance(x, str) else sum(cost_of(y) for y in x)
    total = sum(c(x) for l in pinned.values() for x in l) + sum(c(x[0]) for s_ in streams for x in s_)
    extra = 0
    while True:
        pos = [0] * len(streams); place = {}
        out = []
        for g in range(n):
            b = budget + 4 * (extra * (g + 1) // n - extra * g // n) - sum(c(x) for x in pinned.get(g, []))
            items = list(pinned.get(g, []))
            prog = True
            while prog:
                prog = False
                order = sorted(range(len(streams)), key=lambda k: -(len(streams[k]) - pos[k]) / max(1, len(streams[k])))
                if not os.environ.get("SCHED_FRAC"): order = list(range(len(streams)))
                for k in order:
                    if pos[k] >= len(streams[k]): continue
                    ins, deps = streams[k][pos[k]]
                    if any(place.get(d, n) >= g for d in deps): continue
                    if c(ins) > b: continue
                    if PACE and pos[k] > len(streams[k]) * (g + 1) / n + PACE: continue
                    items.append(ins); b -= c(ins); place[(k, pos[k])] = g; pos[k] += 1; prog = True
                    break
            out.append(items)
        if all(pos[k] == len(streams[k]) for k in range(len(streams))): break
        extra += 1
        assert extra < 20 * n
    for g in range(n):
        A(mf[g])
        for x in out[g]:
            if isinstance(x, str): A(x)
            else:
                for y in x: A(y)
    return extra
PACE = 0
```

```python
from common import *


def setup_xrow_dma(A, vd, pitch):
    A("v_and_b32 v1, 63, v0")
    A("v_lshrrev_b32 v2, 3, v1")
    A(f"v_mul_u32_u24 v2, {pitch}, v2")
    A("v_lshrrev_b32 v3, 4, v1")
    A("v_and_b32 v1, 7, v1")
    A("v_xor_b32 v1, v1, v3")
    A("v_lshl_add_u32 v2, v1, 4, v2")
    for k in range(4):
        if k & 1:
            A(f"v_xor_b32 v{vd+k}, 64, v2")
        else:
            A(f"v_mov_b32 v{vd+k}, v2")
        if k: A(f"v_add_u32 v{vd+k}, {k*(8*pitch-1024)}, v{vd+k}")

def setup_xrow_read(A, vr, sBase):
    A("v_and_b32 v1, 15, v0")
    A("v_bfe_u32 v2, v0, 4, 2")
    A("v_lshrrev_b32 v3, 1, v1")
    A("v_xor_b32 v2, v2, v3")
    A("v_lshlrev_b32 v2, 4, v2")
    A("v_lshl_add_u32 v2, v1, 7, v2")
    A(f"v_add_u32 v{vr}, {sBase}, v2")
    A(f"v_xor_b32 v{vr+1}, 64, v{vr}")

def setup_xfrag_dma(A, vd, rbpitch):
    A("v_and_b32 v1, 63, v0")
    A(f"v_lshlrev_b32 v{vd}, 4, v1")
    A(f"v_add_u32 v{vd+1}, {rbpitch-2048}, v{vd}")

def fsw(order):
    if order == 'nat': return lambda r: (r & 3) | (((r >> 3) & 1) << 2)
    return lambda r: r & 7

def setup_w_dma(A, vd, gpitch, BN, order):
    cpr = BN // 8
    n = 16 * cpr // 64
    A("v_and_b32 v1, 63, v0")
    for k in range(n):
        d = vd + k
        A(f"v_add_u32 v2, {k*64}, v1")
        if cpr & (cpr - 1) == 0:
            sh = cpr.bit_length() - 1
            A(f"v_lshrrev_b32 v3, {sh}, v2")
            A(f"v_and_b32 v2, {cpr-1}, v2")
        else:
            assert cpr in (20, 10)
            A(f"v_mul_u32_u24 v3, {(65536 + cpr - 1)//cpr}, v2")
            A("v_lshrrev_b32 v3, 16, v3")
            A(f"v_mul_u32_u24 v{d}, {cpr}, v3")
            A(f"v_sub_u32 v2, v2, v{d}")
        if cpr & (cpr - 1) == 0:
            if order == 'nat':
                A(f"v_lshrrev_b32 v{d}, 1, v3")
                A(f"v_and_b32 v{d}, 4, v{d}")
                A(f"v_and_or_b32 v{d}, v3, 3, v{d}")
            else:
                A(f"v_and_b32 v{d}, 7, v3")
        else:
            if order == 'nat': A(f"v_bfe_u32 v{d}, v3, 3, 1")
            else: A(f"v_bfe_u32 v{d}, v3, 2, 1")
        A(f"v_lshlrev_b32 v{d}, 1, v{d}")
        A(f"v_xor_b32 v2, v2, v{d}")
        A(f"v_mul_u32_u24 v3, {gpitch}, v3")
        A(f"v_lshl_add_u32 v{d}, v2, 4, v3")
        if k & 3: A(f"v_subrev_u32 v{d}, {(k&3)*1024}, v{d}")
    return n

def setup_w_read(A, vr, BN, order, sBase, sT0, NT=None):
    if NT is None: NT = BN // 32
    pitch = BN * 2
    pow2 = (BN & (BN - 1)) == 0
    A("v_and_b32 v1, 15, v0")
    A("v_bfe_u32 v2, v0, 4, 2")
    A("v_lshrrev_b32 v3, 2, v1")
    A(f"v_lshl_add_u32 v{vr}, v2, {3 if order == 'nat' else 2}, v3")
    if pow2:
        A("v_and_b32 v2, 1, v2")
        A("v_lshl_add_u32 v2, v2, 2, v3")
    else:
        A("v_and_b32 v2, 1, v2")
    A(f"v_mul_u32_u24 v3, {pitch}, v{vr}")
    A("v_and_b32 v1, 3, v1")
    A("v_lshl_add_u32 v3, v1, 3, v3")
    A(f"v_add_u32 v3, {sBase}, v3")
    for t in range(NT):
        A(f"v_mov_b32 v1, {t}")
        A(f"v_add_u32 v1, {sT0}, v1")
        A("v_xor_b32 v1, v1, v2")
        A(f"v_lshl_add_u32 v{vr+t}, v1, 5, v3")

def w_reads(dst_fn, vr, BN, order, slot_off, NT=None):
    if NT is None: NT = BN // 32
    pitch = BN * 2
    out = []
    for ks in range(2):
        for t in range(NT):
            k, i = dst_fn(t, ks)
            for h in range(2):
                off = slot_off + (32 * ks + (4 if order == 'nat' else 16) * h) * pitch
                assert off < 65536, off
                out.append(f"ds_read_b64_tr_b16 {k}[{i+2*h}:{i+2*h+1}], v{vr+t} offset:{off}")
    return out

def dma_group(m0_expr, soff_expr, srd, vregs, stmp):
    out = []
    first = [f"s_add_u32 m0, {m0_expr[0]}, {m0_expr[1]}", f"s_add_u32 {stmp}, {soff_expr[0]}, {soff_expr[1]}"]
    for k, vr in enumerate(vregs):
        ins = f"buffer_load_dwordx4 v{vr}, s[{srd}:{srd+3}], {stmp} offen offset:{k*1024} lds"
        out.append(first + [ins] if k == 0 else ins)
    return out

def merge(*lists):
    items = []
    for li, l in enumerate(lists):
        for i, x in enumerate(l):
            items.append(((i + 0.5) / len(l), li, i, x))
    items.sort(key=lambda t: (t[0], t[1], t[2]))
    return [t[3] for t in items]

class VM:
    def __init__(self): self.ops = []
    def add(self, tag, n=1): self.ops += [tag] * n
    def count(self, *tags):
        last = -1
        for i, t in enumerate(self.ops):
            if t in tags: last = i
        assert all(t in self.ops for t in tags), tags
        n = len(self.ops) - 1 - last
        return min(n, 63)

def emit(A, l):
    for f in l:
        if isinstance(f, str): A(f)
        else:
            for x in f: A(x)

def tag(l, t):
    f = lambda x: x + f" ; @{t}" if x.startswith('buffer_') else x
    return [f(x) if isinstance(x, str) else [f(y) for y in x] for x in l]
```

```python
from gemm import *
import math

QSCALE = math.log2(math.e) / math.sqrt(128.0)
THRESH = 2.0 ** 32
MOFF = 32.0
EXP = os.environ.get('EXP', '')
R = 8

V_L16 = 4
V_RD = 5
V_WD = 6
V_WR = 10
V_T = 18
V_L = 32
V_ONE = 112
V_NM = 48
V_P = 64
V_S = 80
V_O = 128
A_Q = 0
A_K = 64
A_V = 96
S_MASK = 48

def k2(name="k2_attn_kernel"):
    A = Asm()
    ST = Stamper(A, os.environ.get("STAMP") == "k2")
    A(f"""
    s_cmp_ge_u32 s2, 256
    s_cbranch_scc1 {name}_end
    s_load_dwordx2 s[4:5], s[0:1], {A_WQ}
    s_load_dwordx2 s[6:7], s[0:1], {D_WS}
    v_lshrrev_b32 v1, 6, v0
    v_readfirstlane_b32 s20, v1           ; wave
    s_and_b32 s21, s2, 7
    s_lshl_b32 s21, s21, 2
    s_bfe_u32 s22, s2, 0x20003
    s_add_u32 s21, s21, s22               ; head
    s_lshr_b32 s22, s2, 5                 ; i
    s_sub_u32 s23, 15, s22                ; qB
    v_and_b32 v{V_L16}, 63, v0
    v_lshlrev_b32 v{V_L16}, 4, v{V_L16}
    ; z2 lane offset -> v2
    v_lshrrev_b32 v1, 5, v0
    v_mul_u32_u24 v1, 1728, v1
    v_and_b32 v3, 31, v0
    v_lshl_add_u32 v34, v3, 4, v1
    v_cmp_gt_u32 vcc, 27, v3
    v_mov_b32 v1, 0x40000000
    v_cndmask_b32 v34, v1, v34, vcc
    v_cndmask_b32 v35, 0, 1.0, vcc
    s_mul_i32 s24, s2, {8*1728}
    """)
    ST()
    setup_w_dma(A, V_WD, 8192, 128, 'nat')
    A(f"""
    s_lshl_b32 s25, s21, 8
    s_sub_u32 s26, {640*8192}, s25
    s_lshl_b32 s27, s21, 20
    s_add_u32 s27, s27, {WS_KV}
    s_lshl_b32 s28, s20, 12
    s_lshl_b32 s29, s20, 17               ; w*16 rows*8192
    s_lshl_b32 s30, s23, 3
    s_lshl_b32 s31, s20, 1
    s_add_u32 s30, s30, s31               ; first B tile
    s_lshl_b32 s32, s22, 3
    s_add_u32 s31, s32, s31               ; first A tile
    s_mul_i32 s32, s30, 20480
    s_mul_i32 s33, s31, 20480
    s_waitcnt lgkmcnt(0)
    """)
    srd(A, 8, 4, 5, "s25", "s26")
    srd(A, 12, 6, 7, WS_XN, SZ_XN)
    srd(A, 16, 6, 7, "s27", MB)
    srd(A, 40, 6, 7, WS_Z2, SZ_Z)
    srd(A, 44, 6, 7, WS_Z2N, SZ_Z)
    vm = VM()
    ZD = 64
    for j in range(4):
        A(f"buffer_load_dwordx4 {v(ZD+4*j,4)}, v34, s[40:43], s24 offen offset:{j*432}")
    vm.add('z2', 4)
    WB = 98304
    def wdma(st):
        vm.add(('w', st), 4)
        return dma_group(("s28", WB + (st & 3) * 16384), ("s29", st * 64 * 8192), 8, [V_WD + k for k in range(4)], "s34")
    xreg = lambda st, qt, ks: 128 + (st & 3) * 32 + (qt * 2 + ks) * 4
    def xload(st):
        out = []
        for qt in range(4):
            base = "s32" if qt < 2 else "s33"
            o = (qt & 1) * 20480 + st * 2048
            out.append([f"s_add_u32 s35, {base}, {o}", f"buffer_load_dwordx4 {a(xreg(st, qt, 0),4)}, v{V_L16}, s[12:15], s35 offen"])
            out.append(f"buffer_load_dwordx4 {a(xreg(st, qt, 1),4)}, v{V_L16}, s[12:15], s35 offen offset:1024")
        vm.add(('x', st), 8)
        return out
    for st in range(3):
        emit(A, wdma(st)); emit(A, xload(st))
    emit(A, wdma(3))
    A(f"s_mov_b32 s34, {WB}")
    setup_w_read(A, V_WR, 128, 'nat', "s34", "0", NT=8)
    A("v_and_b32 v1, 15, v0")
    A("v_bfe_u32 v2, v0, 4, 2")
    A("v_lshlrev_b32 v2, 2, v2")
    for r in range(4):
        A(f"v_add_u32 v3, {r}, v2")
        A(f"v_cmp_le_u32 s[{S_MASK+2*r}:{S_MASK+2*r+1}], v3, v1")
    ST()
    A(f"s_waitcnt vmcnt({vm.count('z2')})")
    def red(A, r, t):
        for m in ("quad_perm:[1,0,3,2]", "quad_perm:[2,3,0,1]", "row_half_mirror", "row_mirror"):
            A(f"v_add_f32_dpp v{r}, v{r}, v{r} {m} row_mask:0xf bank_mask:0xf")
        swap_reduce(A, "v_add_f32", r, t, 16)
    layernorm_regs(A, ZD, 16, 80, 864, red, validmul=35)
    for j in range(4):
        A(f"buffer_store_dwordx4 {v(ZD+4*j,4)}, v34, s[44:47], s24 offen offset:{j*432}")
    vm.add('z2s', 4)
    ST()
    A(f"""
    s_lshl_b32 s36, s23, 2
    s_add_u32 s36, s36, 3                 ; top
    s_lshr_b32 s37, s20, 1
    s_add_u32 s36, s36, s37
    s_lshl_b32 s36, s36, 14
    s_add_u32 s36, s36, s28               ; + w*4096
    """)
    def kvld():
        return [f"buffer_load_dwordx4 v{V_L16}, s[16:19], s36 offen offset:{k*1024} lds" for k in range(4)]
    def kvdma(slot):
        ld = kvld()
        return [[f"s_add_u32 m0, s28, {slot*16384}", ld[0]], ld[1], ld[2], [ld[3], "s_sub_u32 s36, s36, 16384"]]
    wreg = lambda par, e, ks: par * 64 + (ks * 8 + e) * 4
    def wreads(st):
        return w_reads(lambda t, ks: ('a', wreg(st & 1, t, ks)), V_WR, 128, 'nat', (st & 3) * 16384, NT=8)
    A(f"s_waitcnt vmcnt({vm.count(('w', 0))})")
    A("s_barrier")
    emit(A, wreads(0))
    NS = 10
    qacc = lambda qt, e: V_O + (qt * 8 + e) * 4
    nkv = 0
    for st in range(NS):
        need = [('x', st)] + ([('w', st + 1)] if st + 1 < NS else [])
        A(f"s_waitcnt vmcnt({vm.count(*need)}) lgkmcnt(0)")
        if st + 1 < NS: A("s_barrier")
        ld = []
        if st + 4 < NS: ld += wdma(st + 4)
        if st + 3 < NS: ld += xload(st + 3)
        if st >= 4:
            ld += kvdma(nkv); vm.add(('kv', nkv), 4); nkv += 1
        rd = wreads(st + 1) if st + 1 < NS else []
        mfl = []
        for qt in range(4):
            for e in range(8):
                for ks in range(2):
                    d = v(qacc(qt, e), 4)
                    mfl.append(mfma16(d, a(wreg(st & 1, e, ks), 4), a(xreg(st, qt, ks), 4), "0" if (st == 0 and ks == 0) else None))
        interleave(A, mfl, merge(ld, rd) if rd else ld, 0, 60)
    assert nkv == 6
    ST()
    A(f"s_mov_b32 s34, {fbits(QSCALE)}")
    for qt in range(4):
        for ds in range(4):
            r = qacc(qt, 2 * ds)
            for i in range(8): A(f"v_mul_f32 v{r+i}, s34, v{r+i}")
            for i in range(4): A(f"v_cvt_pk_bf16_f32 v{r+i}, v{r+2*i}, v{r+2*i+1}")
            for i in range(4): A(f"v_accvgpr_write_b32 a{A_Q + (qt*4+ds)*4 + i}, v{r+i}")
    for i in range(128): A(f"v_mov_b32 v{V_O+i}, 0")
    for i in range(16): A(f"v_mov_b32 v{V_L+i}, 0")
    for i in range(4): A(f"v_mov_b32 v{V_ONE+i}, 0x3f803f80")
    A(f"s_mov_b32 s56, {fbits(THRESH)}")
    A(f"s_mov_b32 s57, 0xff800000")
    ST()

    S = lambda qt, t, r=0: V_S + qt * 8 + t * 4 + r
    def qk(qt, mode):
        out = []
        for t in range(2):
            if mode == 'first' and (qt & 1) == 0 and t == 1: continue
            for ds in range(4):
                c = None
                if ds == 0: c = "0" if mode == 'first' else v(V_NM + 4 * qt, 4)
                out.append((mfma16(v(S(qt, t), 4), a(A_K + (t * 4 + ds) * 4, 4), a(A_Q + (qt * 4 + ds) * 4, 4), c), ('k', t * 4 + ds)))
        return out
    def pv(qt):
        out = [(mfma16(v(V_O + (qt * 8 + e) * 4, 4), a(A_V + e * 4, 4), v(V_P + 4 * qt, 4)), ('v', e)) for e in range(8)]
        return [(mfma16(v(V_L + 4 * qt, 4), v(V_ONE, 4), v(V_P + 4 * qt, 4)), ('one', 0))] + out
    exps = lambda qt, n=8: [f"v_exp_f32 v{S(qt,0)+i}, v{S(qt,0)+i}" for i in range(n)]
    cvts = lambda qt, n=8: [f"v_cvt_pk_bf16_f32 v{V_P+4*qt+j}, v{S(qt,0)+2*j}, v{S(qt,0)+2*j+1}" for j in range(n // 2)]
    def rowmax(qt, n, d, t):
        s0 = S(qt, 0)
        out = [f"v_max3_f32 v{d}, v{s0}, v{s0+1}, v{s0+2}"]
        if n == 4: out.append(f"v_max_f32 v{d}, v{d}, v{s0+3}")
        else:
            out += [f"v_max3_f32 v{d}, v{d}, v{s0+3}, v{s0+4}", f"v_max3_f32 v{d}, v{d}, v{s0+5}, v{s0+6}", f"v_max_f32 v{d}, v{d}, v{s0+7}"]
        for wh in (16, 32):
            out += [f"v_mov_b32 v{t}, v{d}", f"v_permlane{wh}_swap_b32 v{t}, v{d}", f"v_max_f32 v{d}, v{d}, v{t}"]
        return out
    def mask(qt, T):
        u = qt & 1
        return [f"v_mov_b32 v{T}, s57"] + [f"v_cndmask_b32 v{S(qt,u,r)}, v{T}, v{S(qt,u,r)}, s[{S_MASK+2*r}:{S_MASK+2*r+1}]" for r in range(4)]
    def sm_diag(qt):
        u = qt & 1
        n = 4 if u == 0 else 8
        T = V_T
        out = mask(qt, T) + rowmax(qt, n, T, T + 1)
        out.append(f"v_add_f32 v{T}, {fbits(MOFF)}, v{T}")
        for i in range(n): out.append(f"v_sub_f32 v{S(qt,0)+i}, v{S(qt,0)+i}, v{T}")
        for r in range(4): out.append(f"v_sub_f32 v{V_NM+4*qt+r}, 0, v{T}")
        out += exps(qt, n) + cvts(qt, n)
        if u == 0: out += [f"v_mov_b32 v{V_P+4*qt+2}, 0", f"v_mov_b32 v{V_P+4*qt+3}, 0"]
        return out
    def phase(mf, steady, diag, after, pin):
        n = len(mf)
        lastpos = {}
        for i, (m, k) in enumerate(mf): lastpos[k] = i
        pinned = {}; loose = []
        for k, ins in after.items():
            if k in lastpos: pinned.setdefault(lastpos[k], []).extend(ins)
            else: loose.extend(ins)
        if n == 0:
            emit(A, loose); emit(A, [x for f, x in pin]); return
        for f, x in pin: pinned.setdefault(int(f * n), []).append(x)
        es = []; cs = []
        for qt in steady:
            base = len(es)
            es += [(x, []) for x in exps(qt)]
            cs += [(x, [(0, base + 2 * j), (0, base + 2 * j + 1)]) for j, x in enumerate(cvts(qt))]
        streams = [es, cs, [(x, []) for qt in diag for x in sm_diag(qt)], [(x, []) for x in loose]]
        ex = sched(A, [m for m, k in mf], pinned, streams)
        if os.environ.get("VERB"): print("phase", n, steady, diag, "extra", ex)
    ncond = [0]
    def top(sync):
        if sync == 'never': return
        if sync == 'cond':
            ncond[0] += 1
            A("s_bitcmp1_b32 s39, 14")
            A(f"s_cbranch_scc1 {name}_nb{ncond[0]}")
            A.label(f"{name}_b{ncond[0]}")
        A(f"s_waitcnt vmcnt({4*(R-4)}) lgkmcnt(0)")
        if 'nobar' not in EXP: A("s_barrier")
        if sync == 'cond': A.label(f"{name}_nb{ncond[0]}")
    ptr = ["s_mov_b32 m0, s37", "s_add_u32 s37, s39, s28", "s_add_u32 s39, s39, 16384", f"s_and_b32 s39, s39, {R*16384-1}"]
    def iteration(modes, tail=[], sync='cond'):
        top(sync)
        kr = {('k', j): [f"ds_read_b128 {a(A_K+4*j,4)}, v{V_RD} offset:{j*1024}"] for j in range(8)}
        vr = {('v', e): [f"ds_read_b128 {a(A_V+4*e,4)}, v{V_RD} offset:{8192+e*1024}"] for e in range(8)}
        mq, mp, st, dg = [], [], [], []
        for st_, md in enumerate(modes):
            q0, q1 = 2 * st_, 2 * st_ + 1
            if md == 'steady': mq += qk(q1, 'n'); mp += pv(q1); st.append(q0)
            elif md == 'diag': mq += qk(q1, 'first'); dg.append(q0)
        other = dict(kr)
        if modes[0] != 'pre': other.update(vr)
        if 'nord' in EXP and modes[0] == 'steady': other = {}
        phase(mq + mp, st, dg, other, [])
        mq, mp, st, dg = [], [], [], []
        for st_, md in enumerate(modes):
            q0, q1 = 2 * st_, 2 * st_ + 1
            if md == 'steady': mq += qk(q0, 'n'); mp += pv(q0); st.append(q1)
            elif md == 'diag': mq += qk(q0, 'n'); mp += pv(q0); dg.append(q1)
            elif md == 'pre': mq += qk(q0, 'first')
        A("s_waitcnt lgkmcnt(%d)" % (8 if modes[0] == 'steady' else 0))
        mfl = mq + mp
        if mp: mfl[len(mq) + 1] = ("s_waitcnt lgkmcnt(0)\n" + mfl[len(mq) + 1][0], mfl[len(mq) + 1][1])
        ld = kvld()
        if 'nodma' in EXP: ld = [[], [], [], []]
        pin = [(0.05, ld[0]), (0.28, ld[1]), (0.51, ld[2]), (0.74, ld[3]), (0.80, ["s_sub_u32 s36, s36, 16384", ptr[0]]),
               (0.86, ptr[1:3]), (0.92, [ptr[3], f"v_add_u32 v{V_RD}, s39, v{V_L16}"]), (0.99, tail)]
        phase(mfl, st, dg, {}, pin)

    def loop(tag, modes, nxt):
        A("s_bitcmp1_b32 s39, 14")
        A(f"s_cbranch_scc1 {name}_{tag}1")
        A.label(f"{name}_{tag}")
        iteration(modes, ["s_sub_u32 s58, s58, 1"], 'always')
        A(f"s_cbranch_scc1 {name}_{nxt}")
        A.label(f"{name}_{tag}1")
        iteration(modes, ["s_sub_u32 s58, s58, 1"], 'never')
        A(f"s_cbranch_scc0 {name}_{tag}")
    A("s_mov_b32 s39, 0")
    A(f"s_add_u32 m0, s28, {6*16384}")
    A(f"s_add_u32 s37, s28, {7*16384}")
    A(f"v_mov_b32 v{V_RD}, v{V_L16}")
    A("s_sub_u32 s58, 3, s20")
    A.label(f"{name}_idle")
    A("s_cmp_eq_u32 s58, 0")
    A(f"s_cbranch_scc1 {name}_preB")
    A.label(f"{name}_idle_b")
    top('cond')
    emit(A, kvld() + ["s_sub_u32 s36, s36, 16384"] + ptr + [f"v_add_u32 v{V_RD}, s39, v{V_L16}"])
    A("s_sub_u32 s58, s58, 1")
    A(f"s_branch {name}_idle")
    A.label(f"{name}_preB")
    iteration(['pre', 'off'])
    iteration(['diag', 'off'])
    A("s_lshl_b32 s58, s22, 3")
    A("s_sub_u32 s58, 57, s58")
    ST()
    loop("loopB", ['steady', 'off'], "preA")
    A.label(f"{name}_preA")
    ST()
    iteration(['steady', 'pre'])
    iteration(['steady', 'diag'])
    ST()
    A("s_lshl_b32 s58, s22, 2")
    A("s_add_u32 s58, s58, s20")
    A("s_sub_u32 s58, s58, 1")
    A(f"s_cbranch_scc1 {name}_drain")
    loop("loopAB", ['steady', 'steady'], "drain")
    A.label(f"{name}_drain")
    ST()
    for m, k in pv(1) + pv(3): A(m)
    srd(A, 40, 6, 7, WS_CTX, SZ_CTX)
    A(f"v_max_f32 v{V_T}, v{V_L}, v{V_L+8}")
    A(f"v_cmp_u_f32 s[60:61], v{V_L}, v{V_L+8}")
    A(f"v_cmp_u_f32 s[62:63], v{V_L+4}, v{V_L+12}")
    A(f"v_max3_f32 v{V_T}, v{V_T}, v{V_L+4}, v{V_L+12}")
    A(f"v_cmp_lt_f32 vcc, s56, v{V_T}")
    A("s_or_b64 s[60:61], s[60:61], s[62:63]")
    A("s_or_b64 vcc, vcc, s[60:61]")
    if not EXP: A(f"s_cbranch_vccnz {name}_slow")
    A.label(f"{name}_fin")
    for qt in (0, 2, 1, 3):
        l = V_L + 4 * qt
        A(f"v_rcp_f32 v{l}, v{l}")
        base = "s30" if qt < 2 else "s31"
        A(f"s_add_u32 s34, {base}, {qt&1}")
        A("s_lshl_b32 s34, s34, 17")
        A("s_lshl_b32 s35, s21, 12")
        A("s_add_u32 s34, s34, s35")
        for ds in range(4):
            r = V_O + (qt * 8 + 2 * ds) * 4
            for i in range(8): A(f"v_mul_f32 v{r+i}, v{r+i}, v{l}")
            for i in range(4): A(f"v_cvt_pk_bf16_f32 v{r+i}, v{r+2*i}, v{r+2*i+1}")
            A(f"buffer_store_dwordx4 {v(r,4)}, v{V_L16}, s[40:43], s34 offen offset:{ds*1024}")
    ST()
    if ST.on: A("s_waitcnt vmcnt(0)")
    ST()
    ST.dump(6, 7, "s20")
    A(f"{name}_end:")
    A("s_endpgm")
    A.label(f"{name}_slow")
    A("s_nop 7")
    M, D, T = V_T, V_T + 1, V_T + 2
    for qt in range(4):
        u = qt & 1
        A(f"s_lshr_b32 s34, {'s30' if qt < 2 else 's31'}, 1")
        A("s_lshl_b32 s34, s34, 14")
        A("s_mov_b32 s35, s34")
        for i in range(32): A(f"v_mov_b32 v{V_O+qt*32+i}, 0")
        for i in range(4): A(f"v_mov_b32 v{V_L+4*qt+i}, 0")
        A(f"v_mov_b32 v{M}, s57")
        A.label(f"{name}_sl{qt}")
        for j in range(16):
            if j % 4 == 0: A(f"s_add_u32 s59, s35, {j*1024}")
            A(f"buffer_load_dwordx4 {a(A_K+4*j,4)}, v{V_L16}, s[16:19], s59 offen offset:{(j&3)*1024}")
        A("s_waitcnt vmcnt(0)")
        for t in range(2):
            for ds in range(4):
                A(mfma16(v(S(qt, t), 4), a(A_K + (t * 4 + ds) * 4, 4), a(A_Q + (qt * 4 + ds) * 4, 4), "0" if ds == 0 else None))
        A("s_nop 7")
        A("s_cmp_lg_u32 s35, s34")
        A(f"s_cbranch_scc1 {name}_sn{qt}")
        A.label(f"{name}_sm{qt}")
        emit(A, mask(qt, T))
        if u == 0:
            for r in range(4): A(f"v_mov_b32 v{S(qt,1,r)}, s57")
        A.label(f"{name}_sn{qt}")
        emit(A, rowmax(qt, 8, D, T))
        A(f"v_max_f32 v{D}, v{D}, v{M}")
        A(f"v_sub_f32 v{T}, v{M}, v{D}")
        A(f"v_exp_f32 v{T}, v{T}")
        A(f"v_mov_b32 v{M}, v{D}")
        for i in range(8): A(f"v_sub_f32 v{S(qt,0)+i}, v{S(qt,0)+i}, v{D}")
        emit(A, exps(qt))
        for i in range(32): A(f"v_mul_f32 v{V_O+qt*32+i}, v{V_O+qt*32+i}, v{T}")
        for i in range(4): A(f"v_mul_f32 v{V_L+4*qt+i}, v{V_L+4*qt+i}, v{T}")
        emit(A, cvts(qt))
        for m, k in pv(qt): A(m)
        A("s_nop 7")
        A("s_sub_u32 s35, s35, 16384")
        A(f"s_cbranch_scc0 {name}_sl{qt}")
        A.label(f"{name}_sx{qt}")
    A(f"s_branch {name}_fin")
    A.fix_blocks()
    return f"; @launch kernel={name} grid=(256,1,1) block=(256,1,1) lds=163840", kernel_wrap(name, A.text(), 512, sgpr=102, accum=256), A

if __name__ == '__main__':
    h, t, A = k2()
    n = "k2_attn_kernel"
    names = [l for l, b in A.blocks]
    def span(a_, b_):
        return names[names.index(a_):names.index(b_)]
    lb = span(f"{n}_loopB", f"{n}_preA"); lab = span(f"{n}_loopAB", f"{n}_drain")
    tr = span(None, f"{n}_loopB") + lb + lb + span(f"{n}_preA", f"{n}_loopAB") + lab + lab + [f"{n}_drain", f"{n}_fin"]
    for p in A.check(tr)[:30]: print(p)
    tr = span(None, f"{n}_loopB") + lb + span(f"{n}_preA", f"{n}_loopAB") + [f"{n}_drain", f"{n}_slow"]
    for q in range(4): tr += [f"{n}_sl{q}", f"{n}_sm{q}", f"{n}_sn{q}", f"{n}_sl{q}", f"{n}_sn{q}", f"{n}_sx{q}"]
    tr += [f"{n}_fin"]
    for p in A.check(tr)[:30]: print(p)
    import re
    nb = lambda t: [x for x in t if not (x and re.search(r'_b[2-9]$', x))]
    B0, B1, C0, C1 = [f"{n}_{x}" for x in ("loopB", "loopB1", "loopAB", "loopAB1")]
    tr = nb(span(None, B0)) + [B1, B0, B1, B0] + nb(span(f"{n}_preA", C0)) + [C1, C0, C1, C0, f"{n}_drain", f"{n}_fin"]
    for p in A.check(tr)[:30]: print(p)
    for l, b in A.blocks: print(l, len(b))
```

```python
from gemm import *
import math

GELU_C0 = -2.0 * 0.7978845608028654 * 1.4426950408889634
GELU_C1 = GELU_C0 * 0.044715
QSCALE = math.log2(math.e) / math.sqrt(128.0)
THRESH = 2.0 ** 32
MOFF = 32.0
EXP = os.environ.get('EXP', '')
R = 8
SC = " sc1"
KVP = os.environ.get('KVP', '')
CTXP = os.environ.get('CTXP', ' sc1')
WST = (2, 3)
SLOT = 32768
OOB = 0x40000000

sW, sWM, sWN, sX, sJ = "s20", "s21", "s22", "s23", "s24"
sL8, sL4 = "s25", "s28"
sXO, sWO = "s26", "s27"
sT, sT2 = "s29", "s34"
sTB, sTA = "s30", "s31"
sXB, sXA = "s32", "s33"
sZX, sP1S = "s35", "s38"
sKV, sM0N, sRD = "s36", "s37", "s39"
sKO = "s56"
sHEAD, sI = "s21", "s22"
sZM, sZN = "s57", "s58"
sCNT = "s58"
S_MASK = 48
V_L16 = 4; V_RD = 5; V_T = 18; V_L = 32; V_NM = 48; V_P = 64; V_S = 80; V_ONE = 112; V_O = 128
A_Q = 0; A_K = 64; A_V = 96
V_SIG = 29
V_POLL = 30
V_DUM = 31

def texts(a_): return [x.text for x in a_.blocks[0][1]]

def ka(name="ka_kernel"):
    A = Asm()
    ST = Stamper(A, os.environ.get("STAMP") == "ka")
    spins = []
    def signal(word_sgpr_expr):
        return ["v_mov_b32 v1, 1", f"buffer_atomic_add v1, v{V_SIG}, s[60:63], {word_sgpr_expr} offen sc1"]
    nrel = [0]
    def release_signal(word):
        nrel[0] += 1
        A("s_cmp_eq_u32 s4, 1")
        A(f"s_cbranch_scc1 {name}_rel{nrel[0]}")
        A.label(f"{name}_wb{nrel[0]}")
        vmsave = A.vm; A.vm = None
        A("buffer_wbl2 sc1")
        A("s_waitcnt vmcnt(0)")
        A.vm = vmsave
        A.label(f"{name}_rel{nrel[0]}")
        emit(A, signal(word))
    poll_ld = lambda: ["v_and_b32 v2, 63, v0", "v_lshlrev_b32 v2, 2, v2", f"buffer_load_dword v{V_POLL}, v2, s[60:63], 0 offen sc1"]
    def poll_chk(tag, need, mask_lo, mask_hi):
        chk = [f"v_cmp_gt_u32 vcc, {need}, v{V_POLL}", f"s_and_b32 vcc_lo, vcc_lo, {mask_lo}", f"s_and_b32 vcc_hi, vcc_hi, {mask_hi}",
               "s_or_b32 vcc_lo, vcc_lo, vcc_hi"]
        emit(A, chk)
        A(f"s_cbranch_scc1 {name}_spin_{tag}")
        A.label(f"{name}_ret_{tag}")
        spins.append((tag, chk))

    A(f"""
    s_cmp_ge_u32 s2, 256
    s_cbranch_scc1 {name}_end
    s_load_dwordx8 s[48:55], s[0:1], 0
    s_load_dwordx2 s[56:57], s[0:1], {A_WUV}
    s_load_dwordx2 s[58:59], s[0:1], {B_WIN}
    s_load_dwordx4 s[4:7], s[0:1], {D_DBG}
    v_lshrrev_b32 v1, 6, v0
    v_readfirstlane_b32 {sW}, v1
    s_and_b32 {sX}, s2, 7
    s_lshr_b32 {sJ}, s2, 3
    v_and_b32 v{V_L16}, 63, v0
    v_lshlrev_b32 v{V_L16}, 4, v{V_L16}
    v_lshrrev_b32 v1, 5, v0
    v_and_b32 v2, 31, v0
    v_mul_u32_u24 v3, 1280, v1
    v_lshl_add_u32 v32, v2, 3, v3
    v_lshrrev_b32 v3, 1, v2
    v_lshlrev_b32 v33, 7, v3
    v_lshl_add_u32 v33, v1, 4, v33
    v_and_b32 v3, 1, v2
    v_lshl_add_u32 v33, v3, 3, v33
    v_add_u32 v33, {2*SLOT}, v33
    s_lshl_b32 s30, {sX}, 5
    s_add_u32 s30, s30, {sJ}
    s_mul_i32 s31, s30, 10240
    s_lshr_b32 {sWM}, {sW}, 1
    s_and_b32 {sWN}, {sW}, 1
    s_lshl_b32 {sL8}, {sW}, 13
    s_lshl_b32 {sL4}, {sW}, 12
    s_lshl_b32 {sXO}, {sW}, 16
    s_lshl_b32 {sWO}, {sW}, 17
    s_and_b32 s32, {sJ}, 7                ; mtile
    s_lshl_b32 s33, s32, 18
    s_bfe_u32 s35, {sJ}, 0x10003          ; hp
    s_lshl_b32 s36, {sX}, 1
    s_add_u32 s35, s35, s36
    s_lshl_b32 s36, s35, 9
    s_sub_u32 s37, {512*8192}, s36
    """)
    ST()
    setup_xrow_dma(A, 5, 1024)
    setup_w_dma(A, 9, 8192, 256, 'nat')
    A("s_waitcnt lgkmcnt(0)")
    srd(A, 40, 48, 49, 0, SZ_XN)
    vm = VM(); A.vm = vm
    for k in range(5): A(f"buffer_load_dwordx2 {v(34+2*k,2)}, v32, s[40:43], s31 offen offset:{k*256} ; @lnx")
    srd(A, 8, 50, 51, "s33", 256 * 1024)
    A(f"s_cmp_ge_u32 {sJ}, 16")
    A("s_cselect_b32 s12, s56, s54")
    A("s_cselect_b32 s13, s57, s55")
    srd(A, 12, 12, 13, "s36", "s37")
    xslot = lambda st: (2 + (st + 1) % 3) * SLOT
    def wdma(st):
        return tag(dma_group((sL8, (st & 1) * SLOT), (sWO, st * 64 * 8192), 12, [9, 10, 11, 12], sT) +
                dma_group((sL8, (st & 1) * SLOT + 4096), (sWO, st * 64 * 8192), 12, [13, 14, 15, 16], sT), f"w{st}")
    def xdma(st):
        return tag(dma_group((sL8, xslot(st)), (sXO, st * 128), 8, [5, 6, 7, 8], sT) +
                dma_group((sL8, xslot(st) + 4096), (sXO, st * 128 + 32 * 1024), 8, [5, 6, 7, 8], sT), f"x{st}")
    for f in (wdma(0), xdma(0)): emit(A, f)
    ST()
    U = Asm(); t1, t2 = "s34", "s38"
    srd(U, 60, 4, 5, 0, 256)
    srd(U, 16, 6, 7, WS_KV, SZ_KV)
    srd(U, 48, 6, 7, WS_XN, SZ_XN)
    U(f"""
    v_cmp_eq_u32 vcc, 0, v0
    v_mov_b32 v1, {OOB}
    v_cndmask_b32 v{V_SIG}, v1, 0, vcc
    s_getreg_b32 {t1}, hwreg(HW_REG_XCC_ID, 0, 4)
    s_lshl_b32 {t1}, 1, {t1}
    v_mov_b32 v1, {t1}
    s_lshl_b32 {t1}, {sX}, 2
    buffer_atomic_or v1, v{V_SIG}, s[60:63], {t1} offen offset:192 sc1
    s_lshl_b32 {sKO}, s35, 1
    s_add_u32 {sKO}, {sKO}, {sWN}
    s_lshl_b32 {sKO}, {sKO}, 3
    s_add_u32 {sKO}, {sKO}, s32
    s_lshl_b32 {sKO}, {sKO}, 1
    s_add_u32 {sKO}, {sKO}, {sWM}
    s_lshl_b32 {sKO}, {sKO}, 16
    s_lshl_b32 s3, s35, 2
    s_add_u32 s3, s3, 64
    s_lshl_b32 {t1}, {sWM}, 14
    s_add_u32 {t1}, {t1}, {2*SLOT}
    """)
    setup_xrow_read(U, 17, t1)
    U(f"v_add_u32 v19, {2*SLOT}, v17")
    U(f"v_add_u32 v20, {2*SLOT}, v18")
    U(f"s_lshl_b32 {t1}, {sWN}, 3")
    setup_w_read(U, 21, 256, 'nat', "0", t1)
    U(f"""
    s_lshr_b32 {t1}, s30, 1
    s_mul_i32 {t1}, {t1}, 20480
    s_and_b32 s39, s30, 1
    s_lshl_b32 s39, s39, 7
    s_add_u32 s39, s39, {t1}
    s_lshl_b32 {t1}, {sW}, 11
    s_add_u32 s39, s39, {t1}              ; xnF offset of this wave's first piece
    s_lshr_b32 s55, s30, 4
    s_lshl_b32 s55, s55, 2
    v_bfe_u32 v1, v0, 5, 1
    v_bfe_u32 v2, v0, 3, 2
    v_and_b32 v3, 7, v0
    v_lshlrev_b32 v3, 4, v3
    v_lshl_add_u32 v3, v2, 8, v3
    v_lshl_add_u32 v{V_DUM}, v1, 10, v3
    v_lshlrev_b32 v{V_POLL}, 4, v0
    v_add_u32 v{V_POLL}, {2*SLOT}, v{V_POLL}
    s_lshl_b32 {sHEAD}, {sX}, 2
    s_and_b32 {t1}, {sJ}, 3
    s_add_u32 {sHEAD}, {sHEAD}, {t1}
    s_lshr_b32 {sI}, {sJ}, 2
    s_lshl_b32 {t1}, {sHEAD}, 8
    s_sub_u32 {t2}, {640*8192}, {t1}
    """)
    srd(U, 44, 52, 53, t1, t2)
    U(f"""
    s_lshr_b32 s37, {sHEAD}, 1
    s_min_u32 {t1}, s37, 13
    s_lshl_b32 {t1}, {t1}, 8
    s_sub_u32 {t2}, {640*3456}, {t1}
    s_cmp_ge_u32 s37, 14
    s_cselect_b32 {t2}, 0, {t2}
    """)
    srd(U, 40, 58, 59, t1, t2)
    U(f"""
    s_mov_b32 {sZN}, s37
    s_sub_u32 {t1}, 15, {sI}
    s_lshl_b32 {sTB}, {t1}, 3
    s_lshl_b32 {t2}, {sW}, 1
    s_add_u32 {sTB}, {sTB}, {t2}
    s_lshl_b32 {sTA}, {sI}, 3
    s_add_u32 {sTA}, {sTA}, {t2}
    s_bitcmp1_b32 {sHEAD}, 0
    s_cselect_b32 {sZM}, {sTA}, {sTB}     ; first t tile of the z rows of this wave (odd heads: block A)
    s_cselect_b32 {sXA}, {sTB}, {sTA}
    s_mul_i32 {sXB}, {sZM}, 20480         ; x tiles 0,1
    s_mul_i32 {sXA}, {sXA}, 20480         ; x tiles 2,3
    s_lshl_b32 {sKV}, {t1}, 2
    s_add_u32 {sKV}, {sKV}, 3
    s_lshr_b32 {t1}, {sW}, 1
    s_add_u32 {sKV}, {sKV}, {t1}
    s_lshl_b32 {sKV}, {sKV}, 14
    s_add_u32 {sKV}, {sKV}, {sL4}
    s_mul_i32 s54, {sW}, {16*3456}
    """)
    interleave(A, texts(U), wdma(1))
    A(f"s_waitcnt vmcnt({vm.count('lnx')})")
    ST()
    def red32(A, r, t):
        for m in ("quad_perm:[1,0,3,2]", "quad_perm:[2,3,0,1]", "row_half_mirror", "row_mirror"):
            A(f"v_add_f32_dpp v{r}, v{r}, v{r} {m} row_mask:0xf bank_mask:0xf")
        swap_reduce(A, "v_add_f32", r, t, 16)
    U = Asm()
    layernorm_regs(U, 34, 10, 48, 640, red32)
    interleave(A, texts(U), xdma(1), 0, 150)
    for k in range(5): A(f"ds_write_b64 v33, {v(34+2*k,2)} offset:{k*2048}")
    lnrd = [f"ds_read_b128 {a(224+4*n,4)}, v{V_POLL} offset:{n*4096}" for n in range(3)]
    lnst = [f"buffer_store_dwordx4 {a(224,4)}, v{V_DUM}, s[48:51], s39 offen{SC}",
            ["s_add_u32 s39, s39, 8192", f"buffer_store_dwordx4 {a(228,4)}, v{V_DUM}, s[48:51], s39 offen{SC}"],
            ["s_add_u32 s39, s39, 8192", f"s_cmp_ge_u32 {sW}, 2", f"s_cselect_b32 s39, {OOB}, s39",
             f"buffer_store_dwordx4 {a(232,4)}, v{V_DUM}, s[48:51], s39 offen{SC}"]]

    accreg_i = lambda i: ('v', 32 + 4 * i) if i < 56 else ('a', 4 * (i - 56))
    accreg = lambda i: (v if i < 56 else a)(accreg_i(i)[1], 4)
    wreg = lambda par, nt, ks: 32 + par * 64 + (ks * 8 + nt) * 4
    xreg = lambda mt, ks: 160 + (mt * 2 + ks) * 4
    def xreads(st, half):
        sl = xslot(st) - 2 * SLOT
        base = 17 if sl < 2 * SLOT else 19
        return [f"ds_read_b128 {a(xreg(mt, ks), 4)}, v{base+ks} offset:{(sl % (2*SLOT)) + mt*2048}"
                for mt in range(4 * half, 4 * half + 4) for ks in range(2)]
    def wreads(st):
        return w_reads(lambda t, ks: ('a', wreg(st & 1, t, ks)), 21, 256, 'nat', (st & 1) * SLOT)
    def pfill(s_):
        o = (s_ % 5) * SLOT
        return tag(dma_group((sL4, o + 16384), ("s54", s_ * 64 * 3456), 40, [5, 6, 7, 8], sT) +
                   dma_group((sL4, o), (sWO, s_ * 64 * 8192), 44, [9, 10, 11, 12], sT), f"p{s_}")
    def preads(s_, z):
        sl = s_ % 5
        r = w_reads(lambda t, ks: ('a', wreg(z, t, ks)), 21, 128, 'nat', (sl & 1) * SLOT + z * 16384, NT=8)
        if not z and sl in (2, 4): r = [[f"v_add_u32 v{21+t}, 65536, v{21+t}" for t in range(8)]] + r
        if not z and s_ == 5: r = [[f"v_subrev_u32 v{21+t}, 131072, v{21+t}" for t in range(8)]] + r
        return r
    QXR = [224, 160, 192]
    def qxload(s_):
        out = []
        for qt in range(4):
            r = QXR[s_ % 3] + qt * 8
            out.append([f"s_add_u32 {sT2}, {sXB if qt < 2 else sXA}, {(qt&1)*20480 + s_*2048}",
                        f"buffer_load_dwordx4 {a(r,4)}, v{V_L16}, s[48:51], {sT2} offen{SC}"])
            out.append(f"buffer_load_dwordx4 {a(r+4,4)}, v{V_L16}, s[48:51], {sT2} offen offset:1024{SC}")
        return tag(out, f"qx{s_}")
    def kvstore(p, tmp=224):
        out = []
        if 2 * p < 56: r = 32 + 8 * p
        else:
            r = tmp + 8 * (p - 28)
            out += [f"v_accvgpr_read_b32 v{r+i}, a{8*(p-28)+i}" for i in range(8)]
        out += [f"v_cvt_pk_bf16_f32 v{r+i}, v{r+2*i}, v{r+2*i+1}" for i in range(4)]
        off = (p >> 3) * 16384 + (p & 7) * 1024
        st_ = f"buffer_store_dwordx4 {v(r,4)}, v{V_L16}, s[16:19], s53 offen offset:{(p&3)*1024}{KVP}"
        out.append([f"s_add_u32 s53, {sKO}, {off}", st_] if (p & 3) == 0 else st_)
        return out
    ST()
    A(f"s_waitcnt vmcnt({vm.count('w0', 'x0')}) lgkmcnt(0)")
    A("s_barrier")
    ST()
    emit(A, wreads(0)); emit(A, xreads(0, 0)); emit(A, lnrd)
    A(f"s_cmp_ge_u32 {sJ}, 16")
    A(f"s_cbranch_scc1 {name}_v")
    vm0 = list(vm.ops)
    for variant in ("k", "v"):
        A.label(f"{name}_{variant}")
        vm.ops = list(vm0)
        if variant == "v": A(f"s_add_u32 {sKO}, {sKO}, 8192")
        idx = (lambda mt, nt: mt * 8 + nt) if variant == "k" else (lambda mt, nt: (mt >> 1) * 16 + nt * 2 + (mt & 1))
        def mf(st, half):
            out = []
            for mt in range(4 * half, 4 * half + 4):
                for nt in range(8):
                    for ks in range(2):
                        w = a(wreg(st & 1, nt, ks), 4); x = a(xreg(mt, ks), 4)
                        d = accreg(idx(mt, nt)); c = "0" if (st == 0 and ks == 0) else None
                        out.append(mfma16(d, w, x, c) if variant == "k" else mfma16(d, x, w, c))
            return out
        for st in range(8):
            if st == 7:
                A(f"s_waitcnt vmcnt({vm.count('pollx')}) lgkmcnt(0)")
                A("s_barrier")
                poll_chk(f"xn{variant}", 16, "0xffff", "0")
                A(f"s_add_u32 {sT}, {sX}, 48")
                A(f"v_readlane_b32 s4, v{V_POLL}, {sT}")
                A("s_bcnt1_i32_b32 s4, s4")
            else:
                A("s_waitcnt lgkmcnt(0)")
                if st != 1: A("s_barrier")
            ld = []; misc = []
            if st == 0: ld = lnst + xdma(2)
            if st <= 5 and st != 1: ld += wdma(st + 2)
            if st == 5:
                l = Asm(); setup_w_dma(l, 5, 3456, 128, 'nat'); misc = texts(l)
            if st == 6: ld = pfill(0)
            if st == 7:
                ld = merge(pfill(1), qxload(0))
                l = Asm(); setup_w_read(l, 21, 128, 'nat', "0", "0", NT=8); misc = texts(l)
            fill = merge(*[x for x in (ld, xreads(st, 1) + [[]] * 8, misc) if x])
            interleave(A, mf(st, 0), fill, 0, 62)
            ST({0: 5, 1: 7, 7: 9, 2: 24, 3: 26, 4: 28, 5: 30}[st]) if st != 6 and not ('qz' in EXP) else None
            if st == 1: A("s_waitcnt vmcnt(0) lgkmcnt(0)")
            elif st < 7: A(f"s_waitcnt vmcnt({vm.count(f'w{st+1}', f'x{st+1}')}) lgkmcnt(0)")
            else: A(f"s_waitcnt vmcnt({vm.count('p0')}) lgkmcnt(0)")
            A("s_barrier")
            ST({0: 6, 1: 8, 7: 10, 2: 25, 3: 27, 4: 29, 5: 31}[st]) if st != 6 and not ('qz' in EXP) else None
            ld = []
            if st == 1:
                ld += [signal("s55")]
                ld += wdma(3)
            if st in WST:
                pitch, n, d = ((8192, 20, 44), (3456, 10, 40))[WST.index(st)]
                w_ = ["v_bfe_u32 v1, v0, 1, 5", f"v_cmp_gt_u32 vcc, {n}, v1", f"v_mul_u32_u24 v1, {pitch}, v1", "v_and_b32 v2, 1, v0",
                      "v_lshl_add_u32 v1, v2, 7, v1", f"v_mov_b32 v2, {OOB}", "v_cndmask_b32 v1, v2, v1, vcc"]
                if d == 44: w_ += [f"s_lshl_b32 {sT2}, {sI}, 2"]
                else: w_ += [f"s_and_b32 {sT2}, {sHEAD}, 1", f"s_lshl_b32 s39, {sI}, 1", f"s_add_u32 {sT2}, {sT2}, s39", f"s_lshl_b32 {sT2}, {sT2}, 2"]
                w_ += [f"s_add_u32 {sT2}, {sT2}, {sW}", f"s_mul_i32 {sT2}, {sT2}, {n*pitch}",
                       f"buffer_load_dword v{V_DUM}, v1, s[{d}:{d+3}], {sT2} offen"]
                ld += [w_[:7], w_[7:]]
            if st == 6:
                ld += tag([poll_ld()], 'pollx')
            if st == 5:
                D = 8192 - 3456
                ld += [["v_bfe_u32 v1, v0, 4, 2", f"v_mul_u32_u24 v1, {D}, v1"] +
                       sum([[f"v_add_u32 v{9+k}, v{5+k}, v1"] + ([f"v_add_u32 v{9+k}, {4*k*D}, v{9+k}"] if k else []) for k in range(4)], [])]
            if st <= 4: ld += xdma(st + 3)
            elif st < 7: ld += pfill(st - 3)
            if st < 7:
                fill = merge(ld, xreads(st + 1, 0) + wreads(st + 1))
            else:
                stores = []
                for p in range(16): stores += kvstore(p)
                fill = merge(stores, pfill(4), qxload(1), preads(0, 0))
            interleave(A, mf(st, 1), fill, 0, 60)
        if variant == "k": A(f"s_branch {name}_z")
    A.label(f"{name}_z")
    ST(11)
    zacc = lambda tt, e: 160 + (tt * 8 + e) * 4
    qacc = lambda qt, e: 32 + (qt * 8 + e) * 4
    NS = 10
    A(f"s_lshl_b32 {sT}, {sHEAD}, 20")
    A(f"s_add_u32 {sT}, {sT}, {WS_KV}")
    srd(A, 8, 6, 7, sT, MB)
    A(f"s_lshr_b32 {sT}, {sHEAD}, 1")
    A(f"s_add_u32 {sT}, {sT}, 16")
    A(f"s_lshl_b32 s52, 1, {sT}")
    def kvld():
        return [f"buffer_load_dwordx4 v{V_L16}, s[8:11], {sKV} offen offset:{k*1024}{SC} lds" for k in range(4)]
    def kvdma(slot):
        ld = kvld()
        return [[f"s_add_u32 m0, {sL4}, {slot*16384}", ld[0]], ld[1], ld[2], [ld[3], f"s_sub_u32 {sKV}, {sKV}, 16384"]]
    carry = []
    for st in range(NS):
        if 'qz' in EXP: ST(3 * st + 1)
        A(f"s_waitcnt vmcnt({vm.count(f'qx{st}')}) lgkmcnt(0)")
        if 'qz' in EXP: ST(3 * st + 2)
        xl = qxload(st + 2) if st + 2 < NS else []
        stores = []
        if st < 2:
            for p in range(16 + 8 * st, 24 + 8 * st): stores += kvstore(p)
        ldq = merge(carry, xl[:6]) if (carry and xl) else (carry or xl[:6])
        if st == 6: ldq = ldq[:3] + tag([poll_ld()], 'pollk') + ldq[3:]
        if st == 2: ldq = ldq + [[]] * 8
        mfl = [mfma16(v(qacc(qt, e), 4), a(wreg(0, e, ks), 4), a(QXR[st % 3] + qt * 8 + ks * 4, 4), "0" if (st == 0 and ks == 0) else None)
               for qt in range(4) for e in range(8) for ks in range(2)]
        interleave(A, mfl, merge(*[x for x in (ldq, stores, preads(st, 1)) if x]), 0, 60)
        if 'qz' in EXP: ST(3 * st + 3)
        if st == 2: A("s_waitcnt vmcnt(0) lgkmcnt(0)")
        elif st == 6: A(f"s_waitcnt vmcnt({vm.count('p7', 'pollk')}) lgkmcnt(0)")
        elif st + 1 < NS: A(f"s_waitcnt vmcnt({vm.count(f'p{st+1}')}) lgkmcnt(0)")
        else: A("s_waitcnt lgkmcnt(0)")
        if st + 1 < NS: A("s_barrier")
        if st == 2: release_signal("s3")
        if st == 6: poll_chk("kv", 16, "s52", "0")
        per = pfill(st + 5) if st < 5 else (kvdma(2 * (st - 6)) + kvdma(2 * (st - 6) + 1) if 6 <= st <= 8 else [])
        carry = per[4:]
        ldz = merge(per[:4], xl[6:]) if (per and xl) else (per[:4] or xl[6:])
        mfl = [mfma16(v(zacc(tt, e), 4), a(wreg(1, e, ks), 4), a(QXR[st % 3] + tt * 8 + ks * 4, 4), "0" if (st == 0 and ks == 0) else None)
               for tt in range(2) for e in range(8) for ks in range(2)]
        rd = preads(st + 1, 0) if st + 1 < NS else []
        interleave(A, mfl, merge(*[x for x in (ldz, rd) if x]) if (ldz or rd) else [], 0, 29)
    if 'qz' in EXP: ST(31); ST.on = False; STD = Stamper(A, True)
    ST(12)
    A(f"s_load_dwordx2 s[16:17], s[0:1], {A_WO}")
    A(f"s_load_dwordx2 s[44:45], s[0:1], {B_WSP}")
    A(f"s_load_dwordx2 s[48:49], s[0:1], {B_WOUT}")
    G = Asm()
    G(f"s_mov_b32 s52, {fbits(GELU_C1)}")
    G(f"v_mov_b32 v3, {fbits(GELU_C0)}")
    for b in range(0, 64, 8):
        rs = [160 + b + i for i in range(8)]
        ts = [224 + i for i in range(8)]
        for r, t in zip(rs, ts): G(f"v_mul_f32 v{t}, v{r}, v{r}")
        for r, t in zip(rs, ts): G(f"v_fma_f32 v{t}, v{t}, s52, v3")
        for r, t in zip(rs, ts): G(f"v_mul_f32 v{t}, v{t}, v{r}")
        for r, t in zip(rs, ts): G(f"v_exp_f32 v{t}, v{t}")
        for r, t in zip(rs, ts): G(f"v_add_f32 v{t}, 1.0, v{t}")
        for r, t in zip(rs, ts): G(f"v_rcp_f32 v{t}, v{t}")
        for r, t in zip(rs, ts): G(f"v_mul_f32 v{r}, v{r}, v{t}")
        for i in range(4): G(f"v_cvt_pk_bf16_f32 v{160+b+i}, v{160+b+2*i}, v{160+b+2*i+1}")
    emit(A, texts(G))
    ST(13)
    srd(A, 12, 6, 7, WS_Z1, SZ_Z)
    srd(A, 40, 6, 7, WS_Z2, SZ_Z)
    A(f"""
    v_and_b32 v1, 15, v0
    v_mul_u32_u24 v1, 1728, v1
    v_bfe_u32 v2, v0, 4, 1
    v_lshl_add_u32 v1, v2, 5, v1
    v_bfe_u32 v2, v0, 5, 1
    v_lshl_add_u32 v2, v2, 4, v1
    s_mov_b32 s52, {sZM}                  ; first t tile
    s_lshl_b32 s53, {sZN}, 2              ; first f step
    """)
    A.vm = None
    for q in range(4):
        A(f"s_add_u32 {sT}, s53, {q}")
        A(f"s_cmp_ge_u32 {sT}, 27")
        A(f"s_cbranch_scc1 {name}_zs2_{q}")
        A.label(f"{name}_zs1_{q}")
        A(f"s_mul_i32 {sT2}, s52, 27")
        A(f"s_add_u32 {sT2}, {sT2}, {sT}")
        A(f"s_lshl_b32 {sT2}, {sT2}, 10")
        for tt in range(2):
            if tt: A(f"s_add_u32 {sT2}, {sT2}, {27*1024}")
            A(f"buffer_store_dwordx4 {v(zacc(tt, 2*q), 4)}, v{V_L16}, s[12:15], {sT2} offen")
        A(f"s_branch {name}_zs3_{q}")
        A.label(f"{name}_zs2_{q}")
        A(f"s_mul_i32 {sT2}, s52, {16*1728}")
        A(f"s_cmp_ge_u32 {sT}, 54")
        A(f"s_cselect_b32 {sT2}, {OOB}, {sT2}")
        A(f"s_sub_u32 {sT}, {sT}, 27")
        A(f"s_lshl_b32 {sT}, {sT}, 6")
        A(f"s_add_u32 {sT2}, {sT2}, {sT}")
        for tt in range(2):
            r = zacc(tt, 2 * q)
            A(f"v_permlane16_swap_b32 v{r}, v{r+2}")
            A(f"v_permlane16_swap_b32 v{r+1}, v{r+3}")
            if tt: A(f"s_add_u32 {sT2}, {sT2}, {16*1728}")
            A(f"buffer_store_dwordx4 {v(r, 4)}, v2, s[40:43], {sT2} offen{SC}")
        A.label(f"{name}_zs3_{q}")
    vm.add('zs', 8); A.vm = vm
    A(f"s_lshr_b32 s3, {sZM}, 3")
    A("s_lshl_b32 s3, s3, 2")
    A("s_add_u32 s3, s3, 128")
    A(f"s_cmp_ge_u32 {sZN}, 14")
    A(f"s_cselect_b32 s3, {OOB}, s3")
    ST(14)
    A(f"s_mov_b32 {sT}, {fbits(QSCALE)}")
    for r in range(32, 160, 8):
        for i in range(8): A(f"v_mul_f32 v{r+i}, {sT}, v{r+i}")
        for i in range(4): A(f"v_cvt_pk_bf16_f32 v{r+i}, v{r+2*i}, v{r+2*i+1}")
    A(f"s_bitcmp1_b32 {sHEAD}, 0")
    A(f"s_cbranch_scc1 {name}_qc1")
    for odd in range(2):
        A.label(f"{name}_qc{odd}")
        for qt in range(4):
            for ds in range(4):
                for i in range(4): A(f"v_accvgpr_write_b32 a{A_Q + ((qt ^ (2*odd))*4+ds)*4 + i}, v{qacc(qt, 2*ds)+i}")
        if not odd: A(f"s_branch {name}_q")
    A.label(f"{name}_q")
    ST(15)
    A("s_waitcnt lgkmcnt(0)")
    A("s_mov_b32 s12, s48")
    A("s_mov_b32 s13, s49")
    for i in range(128): A(f"v_mov_b32 v{V_O+i}, 0")
    for i in range(16): A(f"v_mov_b32 v{V_L+i}, 0")
    for i in range(4): A(f"v_mov_b32 v{V_ONE+i}, 0x3f803f80")
    A("v_and_b32 v1, 15, v0")
    A("v_bfe_u32 v2, v0, 4, 2")
    A("v_lshlrev_b32 v2, 2, v2")
    for r in range(4):
        A(f"v_add_u32 v3, {r}, v2")
        A(f"v_cmp_le_u32 s[{S_MASK+2*r}:{S_MASK+2*r+1}], v3, v1")
    A(f"""
    s_mov_b32 s46, {2048*4096}
    s_mov_b32 s47, 0x20000
    s_lshl_b32 s14, s2, 2
    s_add_u32 s14, s14, {sW}
    s_sub_u32 s14, s14, 512
    s_lshl_b32 s15, s14, 14
    s_cmp_ge_u32 s14, 320
    s_cselect_b32 s16, s12, s16
    s_cselect_b32 s17, s13, s17
    s_mov_b32 s18, {4096*1280}
    s_cselect_b32 s18, {864*1280}, s18
    s_mov_b32 s19, 0x20000
    s_cselect_b32 s14, {320*16384}, 0
    s_sub_u32 s14, s15, s14
    s_cmp_lt_u32 s2, 128
    s_cselect_b32 s14, {OOB}, s14
    s_cselect_b32 s15, {OOB}, s15
    v_lshlrev_b32 v6, 3, v{V_L16}
    v_add_u32 v7, 8192, v6
    s_mov_b32 s56, {fbits(THRESH)}
    s_mov_b32 s57, 0xff800000
    s_waitcnt vmcnt(0)
    s_barrier
    """)
    emit(A, signal("s3"))
    ST(16)
    warm = [f"buffer_load_dword v{V_DUM}, v{r}, s[{d}:{d+3}], {o} offen" for d, o in ((44, "s15"), (16, "s14")) for r in (6, 7)]

    S = lambda qt, t, r=0: V_S + qt * 8 + t * 4 + r
    def qk(qt, mode):
        out = []
        for t in range(2):
            if mode == 'first' and (qt & 1) == 0 and t == 1: continue
            for ds in range(4):
                c = None
                if ds == 0: c = "0" if mode == 'first' else v(V_NM + 4 * qt, 4)
                out.append((mfma16(v(S(qt, t), 4), a(A_K + (t * 4 + ds) * 4, 4), a(A_Q + (qt * 4 + ds) * 4, 4), c), ('k', t * 4 + ds)))
        return out
    def pv(qt):
        out = [(mfma16(v(V_O + (qt * 8 + e) * 4, 4), a(A_V + e * 4, 4), v(V_P + 4 * qt, 4)), ('v', e)) for e in range(8)]
        return [(mfma16(v(V_L + 4 * qt, 4), v(V_ONE, 4), v(V_P + 4 * qt, 4)), ('one', 0))] + out
    exps = lambda qt, n=8: [f"v_exp_f32 v{S(qt,0)+i}, v{S(qt,0)+i}" for i in range(n)]
    cvts = lambda qt, n=8: [f"v_cvt_pk_bf16_f32 v{V_P+4*qt+j}, v{S(qt,0)+2*j}, v{S(qt,0)+2*j+1}" for j in range(n // 2)]
    def rowmax(qt, n, d, t):
        s0 = S(qt, 0)
        out = [f"v_max3_f32 v{d}, v{s0}, v{s0+1}, v{s0+2}"]
        if n == 4: out.append(f"v_max_f32 v{d}, v{d}, v{s0+3}")
        else:
            out += [f"v_max3_f32 v{d}, v{d}, v{s0+3}, v{s0+4}", f"v_max3_f32 v{d}, v{d}, v{s0+5}, v{s0+6}", f"v_max_f32 v{d}, v{d}, v{s0+7}"]
        for wh in (16, 32):
            out += [f"v_mov_b32 v{t}, v{d}", f"v_permlane{wh}_swap_b32 v{t}, v{d}", f"v_max_f32 v{d}, v{d}, v{t}"]
        return out
    def mask(qt, T):
        u = qt & 1
        return [f"v_mov_b32 v{T}, s57"] + [f"v_cndmask_b32 v{S(qt,u,r)}, v{T}, v{S(qt,u,r)}, s[{S_MASK+2*r}:{S_MASK+2*r+1}]" for r in range(4)]
    def sm_diag(qt):
        u = qt & 1
        n = 4 if u == 0 else 8
        T = V_T
        out = mask(qt, T) + rowmax(qt, n, T, T + 1)
        out.append(f"v_add_f32 v{T}, {fbits(MOFF)}, v{T}")
        for i in range(n): out.append(f"v_sub_f32 v{S(qt,0)+i}, v{S(qt,0)+i}, v{T}")
        for r in range(4): out.append(f"v_sub_f32 v{V_NM+4*qt+r}, 0, v{T}")
        out += exps(qt, n) + cvts(qt, n)
        if u == 0: out += [f"v_mov_b32 v{V_P+4*qt+2}, 0", f"v_mov_b32 v{V_P+4*qt+3}, 0"]
        return out
    def phase(mf, steady, diag, after, pin):
        n = len(mf)
        lastpos = {}
        for i, (m, k) in enumerate(mf): lastpos[k] = i
        pinned = {}; loose = []
        for k, ins in after.items():
            if k in lastpos: pinned.setdefault(lastpos[k], []).extend(ins)
            else: loose.extend(ins)
        if n == 0:
            emit(A, loose); emit(A, [x for f, x in pin]); return
        for f, x in pin: pinned.setdefault(int(f * n), []).append(x)
        es = []; cs = []
        for qt in steady:
            base = len(es)
            es += [(x, []) for x in exps(qt)]
            cs += [(x, [(0, base + 2 * j), (0, base + 2 * j + 1)]) for j, x in enumerate(cvts(qt))]
        streams = [es, cs, [(x, []) for qt in diag for x in sm_diag(qt)], [(x, []) for x in loose]]
        sched(A, [m for m, k in mf], pinned, streams)
    ncond = [0]
    def top(sync):
        if sync == 'never': return
        if sync == 'cond':
            ncond[0] += 1
            A(f"s_bitcmp1_b32 {sRD}, 14")
            A(f"s_cbranch_scc1 {name}_nb{ncond[0]}")
            A.label(f"{name}_b{ncond[0]}")
        A(f"s_waitcnt vmcnt({4*(R-4)}) lgkmcnt(0)")
        A("s_barrier")
        if sync == 'cond': A.label(f"{name}_nb{ncond[0]}")
    ptr = [f"s_mov_b32 m0, {sM0N}", f"s_add_u32 {sM0N}, {sRD}, {sL4}", f"s_add_u32 {sRD}, {sRD}, 16384", f"s_and_b32 {sRD}, {sRD}, {R*16384-1}"]
    def iteration(modes, tail=[], sync='cond'):
        top(sync)
        kr = {('k', j): [f"ds_read_b128 {a(A_K+4*j,4)}, v{V_RD} offset:{j*1024}"] for j in range(8)}
        vr = {('v', e): [f"ds_read_b128 {a(A_V+4*e,4)}, v{V_RD} offset:{8192+e*1024}"] for e in range(8)}
        mq, mp, st, dg = [], [], [], []
        for st_, md in enumerate(modes):
            q0, q1 = 2 * st_, 2 * st_ + 1
            if md == 'steady': mq += qk(q1, 'n'); mp += pv(q1); st.append(q0)
            elif md == 'diag': mq += qk(q1, 'first'); dg.append(q0)
        other = dict(kr)
        if modes[0] != 'pre': other.update(vr)
        phase(mq + mp, st, dg, other, [])
        mq, mp, st, dg = [], [], [], []
        for st_, md in enumerate(modes):
            q0, q1 = 2 * st_, 2 * st_ + 1
            if md == 'steady': mq += qk(q0, 'n'); mp += pv(q0); st.append(q1)
            elif md == 'diag': mq += qk(q0, 'n'); mp += pv(q0); dg.append(q1)
            elif md == 'pre': mq += qk(q0, 'first')
        A("s_waitcnt lgkmcnt(%d)" % (8 if modes[0] == 'steady' else 0))
        mfl = mq + mp
        if mp: mfl[len(mq) + 1] = ("s_waitcnt lgkmcnt(0)\n" + mfl[len(mq) + 1][0], mfl[len(mq) + 1][1])
        ld = kvld()
        pin = [(0.05, ld[0]), (0.28, ld[1]), (0.51, ld[2]), (0.74, ld[3]), (0.80, [f"s_sub_u32 {sKV}, {sKV}, 16384", ptr[0]]),
               (0.86, ptr[1:3]), (0.92, [ptr[3], f"v_add_u32 v{V_RD}, {sRD}, v{V_L16}"]), (0.99, tail)]
        phase(mfl, st, dg, {}, pin)
    def loop(tag, modes, nxt):
        A(f"s_bitcmp1_b32 {sRD}, 14")
        A(f"s_cbranch_scc1 {name}_{tag}1")
        A.label(f"{name}_{tag}")
        iteration(modes, [f"s_sub_u32 {sCNT}, {sCNT}, 1"], 'always')
        A(f"s_cbranch_scc1 {name}_{nxt}")
        A.label(f"{name}_{tag}1")
        iteration(modes, [f"s_sub_u32 {sCNT}, {sCNT}, 1"], 'never')
        A(f"s_cbranch_scc0 {name}_{tag}")
    A(f"s_mov_b32 {sRD}, 0")
    A(f"s_add_u32 m0, {sL4}, {6*16384}")
    A(f"s_add_u32 {sM0N}, {sL4}, {7*16384}")
    A(f"v_mov_b32 v{V_RD}, v{V_L16}")
    A(f"s_sub_u32 {sCNT}, 3, {sW}")
    A.label(f"{name}_idle")
    A(f"s_cmp_eq_u32 {sCNT}, 0")
    A(f"s_cbranch_scc1 {name}_preB")
    A.label(f"{name}_idle_b")
    top('cond')
    emit(A, kvld() + [f"s_sub_u32 {sKV}, {sKV}, 16384"] + ptr + [f"v_add_u32 v{V_RD}, {sRD}, v{V_L16}"])
    A(f"s_sub_u32 {sCNT}, {sCNT}, 1")
    A(f"s_branch {name}_idle")
    A.label(f"{name}_preB")
    iteration(['pre', 'off'])
    iteration(['diag', 'off'])
    A(f"s_lshl_b32 {sCNT}, {sI}, 3")
    A(f"s_sub_u32 {sCNT}, 57, {sCNT}")
    ST(17)
    loop("loopB", ['steady', 'off'], "preA")
    A.label(f"{name}_preA")
    ST(18)
    iteration(['steady', 'pre'])
    iteration(['steady', 'diag'], warm)
    ST(19)
    A(f"s_lshl_b32 {sCNT}, {sI}, 2")
    A(f"s_add_u32 {sCNT}, {sCNT}, {sW}")
    A(f"s_sub_u32 {sCNT}, {sCNT}, 1")
    A(f"s_cbranch_scc1 {name}_drain")
    loop("loopAB", ['steady', 'steady'], "drain")
    A.label(f"{name}_drain")
    ST(20)
    emit(A, poll_ld())
    for m, k in pv(1) + pv(3): A(m)
    srd(A, 16, 6, 7, WS_CTX, SZ_CTX)
    srd(A, 40, 6, 7, WS_Z2, SZ_Z)
    srd(A, 44, 6, 7, WS_Z2N, SZ_Z)
    A(f"""
    v_lshrrev_b32 v1, 5, v0
    v_mul_u32_u24 v1, 1728, v1
    v_and_b32 v3, 31, v0
    v_lshl_add_u32 v6, v3, 4, v1
    v_cmp_gt_u32 vcc, 27, v3
    v_mov_b32 v1, {OOB}
    v_cndmask_b32 v6, v1, v6, vcc
    v_cndmask_b32 v7, 0, 1.0, vcc
    s_lshl_b32 s3, {sX}, 5
    s_add_u32 s3, s3, {sJ}
    s_lshr_b32 {sT}, s3, 4
    s_lshl_b32 s12, 1, {sT}
    s_mul_i32 s3, s3, {8*1728}
    """)
    A(f"v_max_f32 v{V_T}, v{V_L}, v{V_L+8}")
    A(f"v_cmp_u_f32 s[14:15], v{V_L}, v{V_L+8}")
    A(f"v_cmp_u_f32 s[58:59], v{V_L+4}, v{V_L+12}")
    A(f"v_max3_f32 v{V_T}, v{V_T}, v{V_L+4}, v{V_L+12}")
    A(f"v_cmp_lt_f32 vcc, s56, v{V_T}")
    A("s_or_b64 s[14:15], s[14:15], s[58:59]")
    A("s_or_b64 vcc, vcc, s[14:15]")
    A(f"s_cbranch_vccnz {name}_slow")
    A.label(f"{name}_fin")
    def fin(qt):
        l = V_L + 4 * qt
        A(f"v_rcp_f32 v{l}, v{l}")
        A(f"s_add_u32 {sT2}, {sTB if qt < 2 else sTA}, {qt&1}")
        A(f"s_lshl_b32 {sT2}, {sT2}, 17")
        A(f"s_lshl_b32 {sT}, {sHEAD}, 12")
        A(f"s_add_u32 {sT2}, {sT2}, {sT}")
        for ds in range(4):
            r = V_O + (qt * 8 + 2 * ds) * 4
            for i in range(8): A(f"v_mul_f32 v{r+i}, v{r+i}, v{l}")
            for i in range(4): A(f"v_cvt_pk_bf16_f32 v{r+i}, v{r+2*i}, v{r+2*i+1}")
            A(f"buffer_store_dwordx4 {v(r,4)}, v{V_L16}, s[16:19], {sT2} offen offset:{ds*1024}{CTXP}")
    fin(0)
    A("s_waitcnt vmcnt(4)")
    poll_chk("z", 14, "0", "s12")
    ZD = 64
    for j in range(4): A(f"buffer_load_dwordx4 {v(ZD+4*j,4)}, v6, s[40:43], s3 offen offset:{j*432}{SC}")
    for qt in (2, 1, 3): fin(qt)
    ST(21)
    A("s_waitcnt vmcnt(12)")
    layernorm_regs(A, ZD, 16, 80, 864, red32, validmul=7)
    for j in range(4): A(f"buffer_store_dwordx4 {v(ZD+4*j,4)}, v6, s[44:47], s3 offen offset:{j*432}{CTXP}")
    ST(22)
    if ST.on: A("s_waitcnt vmcnt(0)")
    ST(23)
    (STD if 'qz' in EXP else ST).dump(6, 7, sW)
    A(f"{name}_end:")
    A("s_endpgm")
    for tg, chk in spins:
        A.label(f"{name}_spin_{tg}")
        A("s_mov_b32 s101, 0x40000")
        A.label(f"{name}_spinl_{tg}")
        c = "s101"
        emit(A, poll_ld())
        A("s_waitcnt vmcnt(0)")
        emit(A, chk)
        A(f"s_cbranch_scc0 {name}_ret_{tg}")
        A(f"s_sub_u32 {c}, {c}, 1")
        A(f"s_cbranch_scc0 {name}_spinl_{tg}")
        A(f"s_branch {name}_ret_{tg}")
    A.label(f"{name}_slow")
    A("s_nop 7")
    M, D, T = V_T, V_T + 1, V_T + 2
    for qt in range(4):
        u = qt & 1
        A(f"s_lshr_b32 {sT2}, {sTB if qt < 2 else sTA}, 1")
        A(f"s_lshl_b32 {sT2}, {sT2}, 14")
        A(f"s_mov_b32 {sT}, {sT2}")
        for i in range(32): A(f"v_mov_b32 v{V_O+qt*32+i}, 0")
        for i in range(4): A(f"v_mov_b32 v{V_L+4*qt+i}, 0")
        A(f"v_mov_b32 v{M}, s57")
        A.label(f"{name}_sl{qt}")
        for j in range(16):
            if j % 4 == 0: A(f"s_add_u32 s59, {sT}, {j*1024}")
            A(f"buffer_load_dwordx4 {a(A_K+4*j,4)}, v{V_L16}, s[8:11], s59 offen offset:{(j&3)*1024}{SC}")
        A("s_waitcnt vmcnt(0)")
        for t in range(2):
            for ds in range(4):
                A(mfma16(v(S(qt, t), 4), a(A_K + (t * 4 + ds) * 4, 4), a(A_Q + (qt * 4 + ds) * 4, 4), "0" if ds == 0 else None))
        A("s_nop 7")
        A(f"s_cmp_lg_u32 {sT}, {sT2}")
        A(f"s_cbranch_scc1 {name}_sn{qt}")
        A.label(f"{name}_sm{qt}")
        emit(A, mask(qt, T))
        if u == 0:
            for r in range(4): A(f"v_mov_b32 v{S(qt,1,r)}, s57")
        A.label(f"{name}_sn{qt}")
        emit(A, rowmax(qt, 8, D, T))
        A(f"v_max_f32 v{D}, v{D}, v{M}")
        A(f"v_sub_f32 v{T}, v{M}, v{D}")
        A(f"v_exp_f32 v{T}, v{T}")
        A(f"v_mov_b32 v{M}, v{D}")
        for i in range(8): A(f"v_sub_f32 v{S(qt,0)+i}, v{S(qt,0)+i}, v{D}")
        emit(A, exps(qt))
        for i in range(32): A(f"v_mul_f32 v{V_O+qt*32+i}, v{V_O+qt*32+i}, v{T}")
        for i in range(4): A(f"v_mul_f32 v{V_L+4*qt+i}, v{V_L+4*qt+i}, v{T}")
        emit(A, cvts(qt))
        for m, k in pv(qt): A(m)
        A("s_nop 7")
        A(f"s_sub_u32 {sT}, {sT}, 16384")
        A(f"s_cbranch_scc0 {name}_sl{qt}")
        A.label(f"{name}_sx{qt}")
    A(f"s_branch {name}_fin")
    A.fix_blocks()
    return f"; @launch kernel={name} grid=(256,1,1) block=(256,1,1) lds=163840", kernel_wrap(name, A.text(), 512, sgpr=102, accum=256), A

if __name__ == '__main__':
    import re
    h, t, A = ka()
    n = "ka_kernel"
    names = [l for l, b in A.blocks]
    def span(a_, b_): return names[names.index(a_):names.index(b_)]
    N = lambda x: f"{n}_{x}"
    nb = lambda t: [x for x in t if not (x and re.search(r'_b[2-9]$', x))]
    B0, B1, C0, C1 = [N(x) for x in ("loopB", "loopB1", "loopAB", "loopAB1")]
    z1 = span(N("z"), N("zs1_0")) + sum([[N(f"zs1_{q}"), N(f"zs3_{q}")] for q in range(4)], []) + [N("qc0")]
    z2 = [x for x in span(N("z"), N("zs1_0")) if '_wb' not in x] + sum([[N(f"zs2_{q}"), N(f"zs3_{q}")] for q in range(4)], []) + [N("qc1")]
    att1 = span(N("q"), B0) + [B0, B1, B0, B1] + span(N("preA"), C0) + [C0, C1, C0, C1] + span(N("drain"), N("end"))
    att2 = nb(span(N("q"), B0)) + [B1, B0, B1, B0] + nb(span(N("preA"), C0)) + [C1, C0, C1, C0] + span(N("drain"), N("end"))
    sl = [N("drain"), N("slow")] + sum([[N(f"sl{q}"), N(f"sm{q}"), N(f"sn{q}"), N(f"sl{q}"), N(f"sn{q}"), N(f"sx{q}")] for q in range(4)], []) + span(N("fin"), N("end"))
    att3 = span(N("q"), B0) + [B0] + span(N("preA"), C0) + sl
    for nm, tr in (("k-z1", [None] + span(N("k"), N("v")) + z1 + att1), ("v-z2", [None] + span(N("v"), N("z")) + z2 + att2),
                   ("k-noz", [None] + span(N("k"), N("v")) + z1 + att3)):
        for p in A.check(tr, nm)[:30]: print(p)
    print(A.count())
```

```python
import sys
from common import *
from k0 import k0
from k1 import k1

def build(kernels, path):
    hdr = open('parallel_sum__compressed_kv_cla__mixer_gmlp__prompt.s.ref').read().split('\n')
    hdr = [l for l in hdr if l.startswith(';') and '@launch' not in l and 'Override' not in l and 'grid=ceil' not in l]
    txt = '\n'.join(hdr) + '\n' + '\n'.join(k[0] for k in kernels) + '\n.amdgcn_target "amdgcn-amd-amdhsa--gfx950"\n' + ''.join(k[1] for k in kernels)
    open(path, 'w').write(txt)
    for k in kernels:
        print(k[0], 'instrs:', k[2].count())

if __name__ == '__main__':
    from k3 import k3
    from k4 import k4
    if os.environ.get("OLD"):
        from k2 import k2
        ks = [k0(), k1(), k2(), k3(), k4()]
    elif not os.environ.get("KA"):
        from kf import kf
        ks = [kf()]
    else:
        from ka import ka
        ks = [ka(), k3(), k4()]
    build(ks, sys.argv[1] if len(sys.argv) > 1 else 'out.s')
```

```python
import re

def v(i, n=1):
    return f"v{i}" if n == 1 else f"v[{i}:{i+n-1}]"
def a(i, n=1):
    return f"a{i}" if n == 1 else f"a[{i}:{i+n-1}]"
def s(i, n=1):
    return f"s{i}" if n == 1 else f"s[{i}:{i+n-1}]"

_REG = re.compile(r'^(-?)(?:abs\()?\|?([vas])(?:(\d+)|\[(\d+):(\d+)\])\|?\)?$')

def regs_of(op):
    op = op.strip()
    if op in ('vcc',):
        return {('s', 106), ('s', 107)}
    if op == 'vcc_lo': return {('s', 106)}
    if op == 'vcc_hi': return {('s', 107)}
    if op == 'm0': return {('s', 124)}
    if op == 'exec': return {('s', 126), ('s', 127)}
    if op == 'exec_lo': return {('s', 126)}
    if op == 'exec_hi': return {('s', 127)}
    m = _REG.match(op)
    if not m:
        return set()
    k = m.group(2)
    if m.group(3) is not None:
        return {(k, int(m.group(3)))}
    return {(k, i) for i in range(int(m.group(4)), int(m.group(5)) + 1)}

TRANS = ('v_exp_f32', 'v_log_f32', 'v_rcp_f32', 'v_rsq_f32', 'v_sqrt_f32', 'v_sin_f32', 'v_cos_f32', 'v_rcp_iflag_f32')

class Ins:
    __slots__ = ('text', 'mn', 'ops', 'mods', 'rd', 'wr', 'kind', 'passes', 'A', 'B', 'C', 'D', 'lds_dma', 'data', 'tag', 'nop')
    def __init__(self, text):
        self.text = text
        t = text.split(';')[0].strip()
        parts = t.split(None, 1)
        self.mn = parts[0]
        rest = parts[1] if len(parts) > 1 else ''
        ops = []
        cur = ''
        depth = 0
        for ch in rest:
            if ch in '[(': depth += 1
            if ch in '])': depth -= 1
            if ch == ',' and depth == 0:
                ops.append(cur.strip()); cur = ''
            else:
                cur += ch
        if cur.strip(): ops.append(cur.strip())
        mods = ''
        if ops:
            last = ops[-1].split(None, 1)
            if len(last) > 1 and not self.mn.startswith('s_waitcnt'):
                ops[-1] = last[0]; mods = last[1]
        self.ops = ops; self.mods = mods
        self.rd = set(); self.wr = set(); self.passes = 0
        self.A = self.B = self.C = self.D = set(); self.lds_dma = False; self.data = set()
        self.nop = 1
        mn = self.mn
        R = regs_of
        if mn.startswith('v_mfma'):
            self.kind = 'mfma'
            self.D = R(ops[0]); self.A = R(ops[1]); self.B = R(ops[2]); self.C = R(ops[3])
            self.wr = set(self.D); self.rd = self.A | self.B | self.C
            self.passes = 8 if '32x32x16' in mn else 4 if '16x16x32' in mn else 16
        elif mn.startswith('v_'):
            self.kind = 'valu'
            if mn.startswith('v_cmp'):
                self.wr = R(ops[0])
                if mn.startswith('v_cmpx'): self.wr |= R('exec')
                for o in ops[1:]: self.rd |= R(o)
            elif mn.startswith('v_permlane') and 'swap' in mn:
                self.wr = R(ops[0]) | R(ops[1]); self.rd = set(self.wr)
            elif mn.startswith(('v_add_co', 'v_sub_co', 'v_subrev_co', 'v_addc_co', 'v_subb_co', 'v_mad_u64_u32', 'v_div_scale')):
                self.wr = R(ops[0]) | R(ops[1])
                for o in ops[2:]: self.rd |= R(o)
            elif mn == 'v_nop':
                pass
            else:
                self.wr = R(ops[0])
                for o in ops[1:]: self.rd |= R(o)
                if mn.startswith(('v_fmac', 'v_pk_fmac', 'v_dot2c', 'v_writelane')) or 'dpp' in mn or 'row_' in mods or 'quad_perm' in mods or 'op_sel' in mods and 'cvt' not in mn and not mn.startswith('v_pk'):
                    self.rd |= R(ops[0])
                if mn.startswith('v_cndmask') and len(ops) == 3: self.rd |= R('vcc')
        elif mn.startswith('ds_'):
            self.kind = 'ds'
            if mn.startswith(('ds_read', 'ds_bpermute', 'ds_permute', 'ds_swizzle')):
                self.wr = R(ops[0])
                for o in ops[1:]: self.rd |= R(o)
            else:
                for o in ops: self.rd |= R(o)
                for o in ops[1:]: self.data |= R(o)
        elif mn.startswith('buffer_'):
            self.kind = 'vmem'
            if mn.startswith(('buffer_wbl2', 'buffer_inv')):
                pass
            elif 'lds' in mods.split():
                self.lds_dma = True
                for o in ops: self.rd |= R(o)
                self.rd |= R('m0')
            elif mn.startswith('buffer_load'):
                self.wr = R(ops[0])
                for o in ops[1:]: self.rd |= R(o)
            else:
                for o in ops: self.rd |= R(o)
                self.data = R(ops[0])
                if 'atomic' in mn and 'sc0' in mods.split(): self.wr = R(ops[0])
        elif mn.startswith('global_'):
            self.kind = 'vmem'
            if mn.startswith('global_load_lds'):
                self.lds_dma = True
                for o in ops: self.rd |= R(o)
                self.rd |= R('m0')
            elif mn.startswith('global_load'):
                self.wr = R(ops[0])
                for o in ops[1:]: self.rd |= R(o)
            elif 'atomic' in mn and 'sc0' in mods.split():
                self.wr = R(ops[0])
                for o in ops[1:]: self.rd |= R(o)
            else:
                for o in ops: self.rd |= R(o)
                self.data = R(ops[1])
        elif mn.startswith(('s_load', 's_buffer_load', 's_memtime', 's_memrealtime', 's_atomic')):
            self.kind = 'smem'
            self.wr = R(ops[0])
            for o in ops[1:]: self.rd |= R(o)
        elif mn.startswith('s_'):
            self.kind = 'salu'
            if mn == 's_nop':
                self.nop = int(ops[0], 0) + 1
            elif mn.startswith(('s_waitcnt', 's_barrier', 's_branch', 's_cbranch', 's_endpgm', 's_setprio', 's_sleep', 's_cmp', 's_bitcmp')):
                for o in ops: self.rd |= R(o)
            else:
                if ops: self.wr = R(ops[0])
                for o in ops[1:]: self.rd |= R(o)
                if 'saveexec' in mn: self.wr |= R('exec'); self.rd |= R('exec')
                if mn.startswith(('s_addk', 's_mulk', 's_cmov')): self.rd |= R(ops[0])
        else:
            raise ValueError("unknown instruction: " + text)

def _vg(rs):
    return {r for r in rs if r[0] in 'va'}
def _sg(rs):
    return {r for r in rs if r[0] == 's'}

def required_gap(p, c):
    need = 0
    if p.kind == 'mfma':
        xdl = {4: (0, 6, 8, 3), 8: (0, 10, 12, 7), 16: (0, 18, 20, 15)}[p.passes]
        if c.kind == 'mfma':
            if c.C & p.D:
                if c.C == p.D and c.passes == p.passes: need = max(need, xdl[0])
                else: need = max(need, xdl[1])
            if (c.A | c.B) & p.D: need = max(need, xdl[2])
            if (c.D & p.D) and not (c.C == p.D): need = max(need, xdl[1])
        elif c.kind in ('valu', 'ds', 'vmem'):
            if (c.rd | c.wr) & p.D: need = max(need, xdl[2])
            if c.kind == 'valu' and (c.wr & p.C): need = max(need, xdl[3])
            if c.kind in ('ds', 'vmem') and (c.wr & p.C): need = max(need, xdl[3])
    elif p.kind == 'valu':
        pw_v = _vg(p.wr); pw_s = _sg(p.wr)
        if c.kind == 'mfma':
            if c.rd & pw_v: need = max(need, 2)
            if ('s', 126) in pw_s: need = max(need, 4)
        if c.kind == 'valu':
            if c.mn.startswith('v_permlane') and (c.rd & pw_v): need = max(need, 2)
            if c.mn.startswith(('v_readlane', 'v_readfirstlane')) and (c.rd & pw_v): need = max(need, 1)
            if ('dpp' in c.mn or 'row_' in c.mods or 'quad_perm' in c.mods or 'wave_' in c.mods) and (c.rd & pw_v): need = max(need, 2)
            if p.mn.startswith(TRANS) and not c.mn.startswith(TRANS) and ((c.rd) & pw_v): need = max(need, 1)
            if pw_s & c.rd:
                need = max(need, 2)
                if c.mn.startswith(('v_readlane', 'v_writelane')): need = max(need, 4)
                if c.mn.startswith('v_div_fmas'): need = max(need, 4)
            if ('s', 126) in pw_s:
                if c.mn.startswith(('v_readlane', 'v_readfirstlane', 'v_writelane', 'v_permlane')): need = max(need, 4)
                if 'dpp' in c.mn or 'row_' in c.mods: need = max(need, 5)
            if ('op_sel' in p.mods and not p.mn.startswith('v_pk') or 'sdwa' in p.mn or 'dst_sel' in p.mods) and (c.rd & pw_v): need = max(need, 1)
        if p.mn.startswith('v_dot') and c.kind in ('valu', 'mfma', 'vmem', 'ds') and ((c.rd | c.wr) & pw_v):
            if not (c.mn == p.mn and c.wr == p.wr): need = max(need, 3)
        if c.kind == 'vmem' and (pw_s & c.rd): need = max(need, 5)
        if p.mn.startswith(TRANS) and c.kind in ('vmem', 'ds') and (c.rd & pw_v): need = max(need, 1)
    elif p.kind == 'vmem':
        if p.data and len(p.data) >= 3:
            if c.wr & p.data: need = max(need, 2 if c.kind == 'valu' or c.kind == 'mfma' else 1)
    elif p.kind == 'salu':
        if ('s', 124) in p.wr and (c.lds_dma or 'addtid' in c.mn): need = max(need, 1)
    return need

def check_hazards(seq, fix=False, name=''):
    out = []
    probs = []
    for c in seq:
        dist = 0
        worst = 0
        for p in reversed(out[-24:]):
            need = required_gap(p, c)
            if need > dist:
                worst = max(worst, need - dist)
                if not fix:
                    probs.append(f"{name}: hazard need {need} have {dist}: [{p.text.strip()}] -> [{c.text.strip()}]")
            dist += p.nop
            if dist >= 21: break
        if fix and worst > 0:
            while worst > 0:
                n = min(worst, 16)
                out.append(Ins(f"s_nop {n-1}"))
                worst -= n
        out.append(c)
    return out if fix else probs

_W = re.compile(r'(vmcnt|lgkmcnt|expcnt)\((\d+)\)')
def check_waits(seq, name=''):
    vm = []
    lg = []
    probs = []
    for c in seq:
        if c.mn == 's_waitcnt':
            for k, n in _W.findall(c.text.split(';')[0]):
                n = int(n)
                if k == 'vmcnt':
                    if len(vm) > n: vm = vm[len(vm) - n:] if n else []
                elif k == 'lgkmcnt':
                    if any(x.kind == 'smem' for x in lg):
                        if n == 0: lg = []
                    else:
                        if len(lg) > n: lg = lg[len(lg) - n:] if n else []
            continue
        touch = c.rd | c.wr
        for o in vm:
            if o.wr & touch:
                probs.append(f"{name}: missing vmcnt wait: [{o.text.strip()}] -> [{c.text.strip()}]")
            if o.data and False: pass
        for o in lg:
            if o.wr & touch and not (c.kind == 'ds' and o.kind == 'ds' and not (o.wr & c.rd)):
                probs.append(f"{name}: missing lgkmcnt wait: [{o.text.strip()}] -> [{c.text.strip()}]")
        if c.kind == 'vmem':
            vm.append(c)
            if len(vm) > 63: probs.append(f"{name}: more than 63 vmem outstanding at [{c.text.strip()}]")
        elif c.kind in ('ds', 'smem'):
            lg.append(c)
    return probs

_NOSCC = ('s_mov', 's_mul_i32', 's_cselect', 's_waitcnt', 's_barrier', 's_branch', 's_cbranch', 's_nop', 's_getreg', 's_getpc', 's_endpgm', 's_setprio', 's_movk')
def writes_scc(i): return i.kind == 'salu' and not i.mn.startswith(_NOSCC)
def reads_scc(i): return i.kind == 'salu' and i.mn.startswith(('s_cselect', 's_addc', 's_subb', 's_cbranch_scc'))
def check_scc(seq, name=''):
    probs = []; last = None
    for c in seq:
        if reads_scc(c) and last is not None:
            ok = last.mn.startswith(('s_cmp', 's_bitcmp'))
            if c.mn.startswith('s_addc'): ok = last.mn == 's_add_u32' and {(k, r + 1) for k, r in last.wr} == c.wr
            elif c.mn.startswith('s_cselect'): ok = ok or (last.mn == 's_sub_u32' and last.wr == c.wr)
            else: ok = ok or last.mn in ('s_or_b32',) or (last.mn == 's_sub_u32' and last.wr and last.wr <= last.rd)
            if not ok: probs.append(f"{name}: scc from [{last.text}] -> [{c.text}]")
        if writes_scc(c): last = c
    return probs
def atomize(texts):
    out = []
    for t in texts:
        if reads_scc(Ins(t)):
            k = len(out) - 1
            while not any(writes_scc(Ins(x)) for x in out[k].split('\n')): k -= 1
            out[k:] = ['\n'.join(out[k:] + [t])]
        else: out.append(t)
    return out

class Asm:
    def __init__(self):
        self.blocks = []
        self.cur = None
        self.vm = None
        self.new_block(None)
    def new_block(self, label):
        self.cur = []
        self.blocks.append([label, self.cur])
    def label(self, name):
        self.new_block(name)
    def __call__(self, text):
        for line in text.split('\n'):
            t = line.strip()
            if not t: continue
            if t.startswith(';') or t.startswith('.'):
                self.cur.append(t); continue
            if t.endswith(':'):
                self.label(t[:-1]); continue
            ins = Ins(t)
            self.cur.append(ins)
            if self.vm is not None and ins.kind == 'vmem':
                self.vm.ops.append(t.split('; @')[1].strip() if '; @' in t else None)
    def block(self, name):
        for l, b in self.blocks:
            if l == name: return [x for x in b if isinstance(x, Ins)]
        raise KeyError(name)
    def fix_blocks(self):
        prev_tail = []
        for ent in self.blocks:
            b = ent[1]
            out = []
            hist = list(prev_tail)
            for x in b:
                if isinstance(x, str):
                    out.append(x); continue
                fixed = check_hazards(hist + [x], fix=True)
                new = fixed[len(hist):]
                out.extend(new)
                hist = (hist + new)[-24:]
            ent[1][:] = out
            prev_tail = hist
    def trace(self, names):
        seq = []
        for n in names: seq += self.block(n)
        return seq
    def check(self, names, name=''):
        seq = self.trace(names)
        return check_hazards(seq, name=name) + check_waits(seq, name=name) + check_scc(seq, name=name)
    def text(self):
        out = []
        for l, b in self.blocks:
            if l: out.append(f"{l}:")
            for x in b:
                if isinstance(x, str):
                    if not x.startswith(';'): out.append(x)
                else: out.append(x.text.split(';')[0].strip())
        return '\n'.join(out) + '\n'
    def count(self):
        return sum(1 for l, b in self.blocks for x in b if isinstance(x, Ins))

def kernel_wrap(name, body, vgpr, sgpr=102, accum=None, wg_y=False):
    if accum is None: accum = (min(vgpr, 256) + 3) // 4 * 4
    txt = f""".text
.globl {name}
.p2align 8
.type {name},@function
{name}:
{body}
.section .rodata,"a"
.p2align 6
.amdhsa_kernel {name}
  .amdhsa_next_free_vgpr {vgpr}
  .amdhsa_next_free_sgpr {sgpr}
  .amdhsa_accum_offset {accum}
  .amdhsa_group_segment_fixed_size 0
  .amdhsa_kernarg_size 112
  .amdhsa_user_sgpr_count 2
  .amdhsa_user_sgpr_kernarg_segment_ptr 1
  .amdhsa_system_sgpr_workgroup_id_x 1
{'  .amdhsa_system_sgpr_workgroup_id_y 1' if wg_y else ''}
.end_amdhsa_kernel
"""
    return txt
```

```python
from asmlib import *

A_X, A_CKV, A_WQ, A_WUK, A_WUV, A_WO, B_X, B_WIN, B_WSP, B_BSP, B_WOUT, D_OUT, D_DBG, D_WS = [8 * i for i in range(14)]
MB = 1 << 20
WS_XN = 0
WS_KV = 4 * MB
WS_Z1 = 40 * MB
WS_Z2 = 44 * MB
WS_Z2N = 48 * MB
WS_CTX = 52 * MB
WS_U = 72 * MB
WS_P = 76 * MB
WS_CNT = 3 * MB
WS_X = 80 * MB
SZ_WS = 128 * MB
SZ_XN = 2048 * 640 * 2
SZ_KV = 32 * MB
SZ_Z = 2048 * 864 * 2
SZ_CTX = 16 * MB
SZ_P = 2 * 128 * 40 * 1024

def srd(A, d, base_lo, base_hi, off, size):
    if off == 0:
        A(f"s_mov_b32 s{d}, s{base_lo}")
        A(f"s_mov_b32 s{d+1}, s{base_hi}")
    else:
        A(f"s_add_u32 s{d}, s{base_lo}, {off}")
        A(f"s_addc_u32 s{d+1}, s{base_hi}, 0")
    A(f"s_mov_b32 s{d+2}, {size}")
    A(f"s_mov_b32 s{d+3}, 0x20000")

def interleave(A, mf, fill, start=0, end=None):
    n = len(mf)
    if end is None: end = n
    span = end - start
    k = 0
    for i, m in enumerate(mf):
        A(m)
        if start <= i < end:
            hi = len(fill) * (i - start + 1) // span
            while k < hi:
                f = fill[k]
                if isinstance(f, str): A(f)
                else:
                    for x in f: A(x)
                k += 1
    assert k == len(fill)

def mfma16(d, x, y, c=None):
    return f"v_mfma_f32_16x16x32_bf16 {d}, {x}, {y}, {d if c is None else c}"

def fbits(x):
    import struct
    return "0x%08x" % struct.unpack("<I", struct.pack("<f", x))[0]

def round_bf16(A, dst, src):
    A(f"v_cvt_pk_bf16_f32 {dst}, {src}, {src}")
    A(f"v_and_b32 {dst}, 0xffff0000, {dst}")

def layernorm_regs(A, data, nd, tmp, N, reduce_fn, validmul=None):
    f = tmp; s0 = tmp + 2 * nd; s1 = s0 + 1; t0 = s0 + 2; mean = s0 + 3; mb = s0 + 4; rs = s0 + 5
    for i in range(nd):
        A(f"v_lshlrev_b32 v{f+2*i}, 16, v{data+i}")
        A(f"v_and_b32 v{f+2*i+1}, 0xffff0000, v{data+i}")
    A(f"v_add_f32 v{s0}, v{f}, v{f+2}")
    A(f"v_add_f32 v{s1}, v{f+1}, v{f+3}")
    for i in range(2, nd):
        A(f"v_add_f32 v{s0}, v{s0}, v{f+2*i}")
        A(f"v_add_f32 v{s1}, v{s1}, v{f+2*i+1}")
    A(f"v_add_f32 v{s0}, v{s0}, v{s1}")
    reduce_fn(A, s0, t0)
    A(f"v_mul_f32 v{mean}, {fbits(1.0/N)}, v{s0}")
    round_bf16(A, f"v{mb}", f"v{mean}")
    A(f"v_mov_b32 v{s0}, 0")
    A(f"v_mov_b32 v{s1}, 0")
    for i in range(nd):
        A(f"v_sub_f32 v{t0}, v{f+2*i}, v{mean}")
        A(f"v_sub_f32 v{rs}, v{f+2*i+1}, v{mean}")
        A(f"v_fmac_f32 v{s0}, v{t0}, v{t0}")
        A(f"v_fmac_f32 v{s1}, v{rs}, v{rs}")
    A(f"v_add_f32 v{s0}, v{s0}, v{s1}")
    if validmul is not None:
        A(f"v_mul_f32 v{s0}, v{s0}, v{validmul}")
    reduce_fn(A, s0, t0)
    A(f"v_mul_f32 v{s0}, {fbits(1.0/N)}, v{s0}")
    round_bf16(A, f"v{s0}", f"v{s0}")
    A(f"v_add_f32 v{s0}, {fbits(1e-5)}, v{s0}")
    round_bf16(A, f"v{s0}", f"v{s0}")
    A(f"v_sqrt_f32 v{s0}, v{s0}")
    round_bf16(A, f"v{s0}", f"v{s0}")
    A(f"v_rcp_f32 v{rs}, v{s0}")
    for i in range(nd):
        A(f"v_sub_f32 v{f+2*i}, v{f+2*i}, v{mb}")
        A(f"v_sub_f32 v{f+2*i+1}, v{f+2*i+1}, v{mb}")
        A(f"v_cvt_pk_bf16_f32 v{data+i}, v{f+2*i}, v{f+2*i+1}")
        A(f"v_lshlrev_b32 v{f+2*i}, 16, v{data+i}")
        A(f"v_and_b32 v{f+2*i+1}, 0xffff0000, v{data+i}")
        A(f"v_mul_f32 v{f+2*i}, v{f+2*i}, v{rs}")
        A(f"v_mul_f32 v{f+2*i+1}, v{f+2*i+1}, v{rs}")
        A(f"v_cvt_pk_bf16_f32 v{data+i}, v{f+2*i}, v{f+2*i+1}")

def swap_reduce(A, op, r, t, which):
    A(f"v_mov_b32 v{t}, v{r}")
    A(f"v_permlane{which}_swap_b32 v{t}, v{r}")
    A(f"{op} v{r}, v{r}, v{t}")

import os
STAMP = bool(os.environ.get("STAMP"))
class Stamper:
    def __init__(self, A, on): self.A = A; self.n = 0; self.on = on and STAMP
    def __call__(self, idx=None):
        if not self.on: return
        i = self.n if idx is None else idx
        self.A("s_memtime s[96:97]" if os.environ.get("STAMPCYC") else "s_memrealtime s[96:97]")
        self.A("s_waitcnt lgkmcnt(0)")
        self.A(f"s_mov_b32 s{64+i}, s96")
        self.n = i + 1
    def dump(self, ws_lo, ws_hi, swave, nw=4):
        if not self.on: return
        A = self.A
        srd(A, 96, ws_lo, ws_hi, 200 * MB, 1 * MB)
        A(f"s_mul_i32 s100, s2, {nw}")
        A(f"s_add_u32 s100, s100, {swave}")
        A("s_lshl_b32 s100, s100, 7")
        A("v_mov_b32 v1, 0")
        for i in range(32):
            A(f"v_mov_b32 v2, s{64+i}")
            A(f"buffer_store_dword v2, v1, s[96:99], s100 offen offset:{4*i}")


def cost_of(t):
    m = t.split()[0]
    if m.startswith(TRANS): return 8
    if m.startswith('buffer_'): return 8
    return 4

def sched(A, mf, pinned, streams, budget=8):
    n = len(mf)
    c = lambda x: cost_of(x) if isinstance(x, str) else sum(cost_of(y) for y in x)
    total = sum(c(x) for l in pinned.values() for x in l) + sum(c(x[0]) for s_ in streams for x in s_)
    extra = 0
    while True:
        pos = [0] * len(streams); place = {}
        out = []
        for g in range(n):
            b = budget + 4 * (extra * (g + 1) // n - extra * g // n) - sum(c(x) for x in pinned.get(g, []))
            items = list(pinned.get(g, []))
            prog = True
            while prog:
                prog = False
                order = sorted(range(len(streams)), key=lambda k: -(len(streams[k]) - pos[k]) / max(1, len(streams[k])))
                if not os.environ.get("SCHED_FRAC"): order = list(range(len(streams)))
                for k in order:
                    if pos[k] >= len(streams[k]): continue
                    ins, deps = streams[k][pos[k]]
                    if any(place.get(d, n) >= g for d in deps): continue
                    if c(ins) > b: continue
                    if PACE and pos[k] > len(streams[k]) * (g + 1) / n + PACE: continue
                    items.append(ins); b -= c(ins); place[(k, pos[k])] = g; pos[k] += 1; prog = True
                    break
            out.append(items)
        if all(pos[k] == len(streams[k]) for k in range(len(streams))): break
        extra += 1
        assert extra < 20 * n
    for g in range(n):
        A(mf[g])
        for x in out[g]:
            if isinstance(x, str): A(x)
            else:
                for y in x: A(y)
    return extra
PACE = 0


def ln_lean(A, data, T, N, reduce_fn, pad=None, X=None):
    s0, mb, mp = T, T + 4, T + 5
    t0, mean = X if X else (T + 10, T + 11)
    f = [T + 6, T + 8]
    zero = lambda: [A(f"v_mov_b64 {v(s0+2*i,2)}, 0") for i in range(2)]
    def fold():
        A(f"v_pk_add_f32 {v(s0,2)}, {v(s0,2)}, {v(s0+2,2)}")
        A(f"v_add_f32 v{s0}, v{s0}, v{s0+1}")
        reduce_fn(A, s0, t0)
    def unpack(p):
        for x, d in zip(f, p):
            A(f"v_lshlrev_b32 v{x}, 16, v{d}")
            A(f"v_and_b32 v{x+1}, 0xffff0000, v{d}")
    zero()
    for i, d in enumerate(data): A(f"v_dot2c_f32_bf16 v{s0 + (i & 3)}, 0x3f803f80, v{d}")
    fold()
    A(f"v_mul_f32 v{mean}, {fbits(1.0/N)}, v{s0}")
    round_bf16(A, f"v{mb}", f"v{mean}")
    zero()
    if pad: A(f"v_mul_f32 v{mp}, v{mb}, v{pad[1]}")
    A(f"v_sub_f32 v{mean}, v{mean}, v{mb}")
    for i in range(0, len(data), 2):
        p = data[i:i+2]
        unpack(p)
        sel = "op_sel:[0,1] op_sel_hi:[1,1]" if (pad and i >= pad[0]) else "op_sel_hi:[1,0]"
        for x in f: A(f"v_pk_add_f32 {v(x,2)}, {v(x,2)}, {v(mb,2)} {sel} neg_lo:[0,1] neg_hi:[0,1]")
        for k, x in enumerate(f): A(f"v_pk_fma_f32 {v(s0+2*k,2)}, {v(x,2)}, {v(x,2)}, {v(s0+2*k,2)}")
        for x, d in zip(f, p): A(f"v_cvt_pk_bf16_f32 v{d}, v{x}, v{x+1}")
    fold()
    A(f"v_mul_f32 v{mean}, v{mean}, v{mean}")
    A(f"v_mul_f32 v{s0}, {fbits(1.0/N)}, v{s0}")
    A(f"v_sub_f32 v{s0}, v{s0}, v{mean}")
    A(f"v_max_f32 v{s0}, 0, v{s0}")
    round_bf16(A, f"v{s0}", f"v{s0}")
    A(f"v_add_f32 v{s0}, {fbits(1e-5)}, v{s0}")
    round_bf16(A, f"v{s0}", f"v{s0}")
    A(f"v_sqrt_f32 v{s0}, v{s0}")
    round_bf16(A, f"v{s0}", f"v{s0}")
    A(f"v_rcp_f32 v{mb}, v{s0}")
    for i in range(0, len(data), 2):
        p = data[i:i+2]
        unpack(p)
        for x in f: A(f"v_pk_mul_f32 {v(x,2)}, {v(x,2)}, {v(mb,2)} op_sel_hi:[1,0]")
        for x, d in zip(f, p): A(f"v_cvt_pk_bf16_f32 v{d}, v{x}, v{x+1}")
```

```python
from gemm import *

def k3(name="k3_go_kernel"):
    A = Asm()
    ST = Stamper(A, os.environ.get("STAMP") == "k3")
    XS = 16384
    WBASE = 4 * XS
    A(f"""
    s_lshr_b32 s24, s2, 3                 ; j
    s_cmp_ge_u32 s24, 32
    s_cbranch_scc1 {name}_end
    s_load_dwordx2 s[4:5], s[0:1], {A_WO}
    s_load_dwordx2 s[6:7], s[0:1], {D_WS}
    s_load_dwordx4 s[36:39], s[0:1], {B_WSP}
    v_lshrrev_b32 v1, 6, v0
    v_readfirstlane_b32 s20, v1
    s_and_b32 s23, s2, 7                  ; x
    v_and_b32 v26, 63, v0
    v_lshlrev_b32 v26, 4, v26
    s_lshr_b32 s21, s20, 1                ; wm
    s_and_b32 s22, s20, 1                 ; wn
    s_lshl_b32 s25, s20, 12
    """)
    ST(0)
    if os.environ.get("HALF"):
        A(f"s_bitcmp1_b32 s24, {os.environ['HALF']}")
        A(f"s_cbranch_scc1 {name}_end")
    A("s_bitcmp1_b32 s23, 0")
    A(f"s_cbranch_scc1 {name}_g")
    PF = int(os.environ.get("PF", "0"))
    ACC = 64
    for var in ("o", "g"):
        A.label(f"{name}_{var}")
        if var == "o":
            BN, NT, order, wpitch, xstep = 160, 5, 'perm', 1280, 2048
            A(f"""
            s_bfe_u32 s30, s23, 0x10001           ; split
            s_lshr_b32 s31, s23, 2
            s_lshl_b32 s31, s31, 3
            s_lshr_b32 s32, s24, 2
            s_add_u32 s31, s31, s32               ; mtile
            s_and_b32 s32, s24, 3                 ; ntile
            s_lshl_b32 s33, s31, 20
            s_lshl_b32 s34, s30, 16
            s_add_u32 s33, s33, s34
            s_add_u32 s33, s33, {WS_CTX}
            s_sub_u32 s40, {MB}, s34
            s_mul_i32 s34, s30, {2048*1280}
            s_mul_i32 s35, s32, 320
            s_add_u32 s34, s34, s35
            s_sub_u32 s35, {4096*1280}, s34
            s_lshl_b32 s26, s20, 18
            s_mul_i32 s27, s20, {16*1280}
            s_mul_i32 s29, s20, 5120
            """)
            setup_xfrag_dma(A, 4, 131072)
            A(f"""
            v_and_b32 v1, 63, v0
            v_lshlrev_b32 v24, 7, v1
            v_mov_b32 v2, 0x40000000
            v_cmp_gt_u32 vcc, 32, v1
            v_cndmask_b32 v24, v2, v24, vcc
            v_lshrrev_b32 v3, 2, v1
            v_mul_u32_u24 v3, 1280, v3
            v_and_b32 v1, 3, v1
            v_min_u32 v1, 2, v1
            v_lshl_add_u32 v25, v1, 7, v3
            v_cndmask_b32 v25, v2, v25, vcc
            s_lshl_b32 s48, s32, 1
            s_add_u32 s48, s48, s21
            s_lshl_b32 s48, s48, 17
            s_lshl_b32 s49, s22, 12
            s_add_u32 s48, s48, s49
            s_lshr_b32 s49, s24, 2
            s_lshl_b32 s49, s49, 2
            s_add_u32 s49, s49, s20
            s_mul_i32 s49, s49, {8*1280}
            """)
            xv = [4, 4, 5, 5]
        else:
            BN, NT, order, wpitch, xstep = 128, 4, 'nat', 1728, 128
            A(f"""
            s_cmp_ge_u32 s24, 28
            s_cbranch_scc1 {name}_end
            s_and_b32 s31, s24, 3
            s_lshr_b32 s33, s23, 1
            s_lshl_b32 s33, s33, 2
            s_add_u32 s31, s31, s33               ; mtile
            s_lshr_b32 s32, s24, 2                ; ntile
            s_lshl_b32 s33, s31, 19
            s_lshl_b32 s34, s32, 8
            s_sub_u32 s35, {SZ_Z}, s34
            s_add_u32 s34, s34, {WS_Z2N}
            s_lshl_b32 s26, s20, 17               ; w*32 rows*4096
            s_mul_i32 s27, s20, {16*1728}
            s_lshl_b32 s29, s20, 12
            """)
            setup_xrow_dma(A, 4, 4096)
            A(f"""
            v_and_b32 v1, 63, v0
            v_lshrrev_b32 v3, 2, v1
            v_lshlrev_b32 v24, 12, v3
            v_and_b32 v2, 3, v1
            v_lshl_add_u32 v24, v2, 7, v24
            v_mul_u32_u24 v3, 1728, v3
            v_lshlrev_b32 v2, 7, v2
            v_min_u32 v2, 252, v2
            v_add_u32 v25, v2, v3
            v_mov_b32 v2, 0x40000000
            v_cmp_gt_u32 vcc, 20, v1
            v_cndmask_b32 v24, v2, v24, vcc
            s_lshl_b32 s48, s32, 2
            s_add_u32 s48, s48, s20
            s_mul_i32 s48, s48, {5*4096}
            s_and_b32 s49, s24, 3
            s_lshl_b32 s49, s49, 2
            s_add_u32 s49, s49, s20
            s_mul_i32 s49, s49, {16*1728}
            """)
            xv = [4, 5, 6, 7]
        WSL = 64 * BN * 2
        nw = setup_w_dma(A, 8, wpitch, BN, order)
        A(f"s_add_u32 s29, s29, {WBASE}")
        A("s_waitcnt lgkmcnt(0)")
        if var == "o":
            srd(A, 8, 6, 7, "s33", "s40")
            srd(A, 12, 4, 5, "s34", "s35")
        else:
            srd(A, 8, 36, 37, "s33", 128 * 4096)
            srd(A, 12, 6, 7, "s34", "s35")
        ND = 4 + nw
        def dma(slot):
            x = [[f"s_add_u32 m0, s25, {slot*XS}", f"buffer_load_dwordx4 v{xv[0]}, s[8:11], s26 offen lds"]]
            x += [f"buffer_load_dwordx4 v{xv[k]}, s[8:11], s26 offen offset:{k*1024} lds" for k in (1, 2)]
            x += [[f"buffer_load_dwordx4 v{xv[3]}, s[8:11], s26 offen offset:3072 lds", f"s_add_u32 s26, s26, {xstep}"]]
            w = []
            for k in range(nw):
                ins = [f"buffer_load_dwordx4 v{8+k}, s[12:15], s27 offen offset:{(k&3)*1024} lds"]
                if k & 3 == 0: ins = [f"s_add_u32 m0, s29, {slot*WSL + k*1024}"] + ins
                if k == nw - 1: ins = ins + [f"s_add_u32 s27, s27, {64*wpitch}"]
                w.append(ins)
            return x + w
        pf = [[f"s_add_u32 s48, s48, {4*xstep}", "buffer_load_dword v27, v24, s[8:11], s48 offen"],
              [f"s_add_u32 s49, s49, {256*wpitch}", "buffer_load_dword v27, v25, s[12:15], s49 offen"]] if PF else []
        NP = len(pf)
        for st in range(4):
            emit(A, dma(st))
            if st < PF - 1 and st < 2: emit(A, pf)
        ST(1)
        if var == "o":
            A("s_lshl_b32 s28, s21, 13")
            A("v_add_u32 v16, s28, v26")
        else:
            A("s_lshl_b32 s28, s21, 13")
            setup_xrow_read(A, 16, "s28")
        A(f"s_mov_b32 s28, {WBASE}")
        A(f"s_mul_i32 s41, s22, {NT}")
        setup_w_read(A, 18, BN, order, "s28", "s41", NT=NT)
        for t in range(NT): A(f"v_add_u32 v{28+t}, {2*WSL}, v{18+t}")
        acc = lambda mt, nt: ACC + (mt * NT + nt) * 4
        for i in range(16 * NT): A(f"v_mov_b32 v{ACC+i}, 0")
        xr = lambda par, mt, ks: par * 32 + (mt * 2 + ks) * 4
        wr = lambda par, nt, ks: 64 + par * 40 + (ks * NT + nt) * 4
        def reads(st):
            slot = st & 3
            if var == "o":
                r = [f"ds_read_b128 {a(xr(st&1, mt, ks), 4)}, v16 offset:{slot*XS + mt*2048 + ks*1024}" for mt in range(4) for ks in range(2)]
            else:
                r = [f"ds_read_b128 {a(xr(st&1, mt, ks), 4)}, v{16+ks} offset:{slot*XS + mt*2048}" for mt in range(4) for ks in range(2)]
            w = w_reads(lambda t, ks: ('a', wr(st & 1, t, ks)), 18 if slot < 2 else 28, BN, order, (slot & 1) * WSL, NT=NT)
            return merge(r, w)
        def stage(st, wait, ld, rd=True):
            if wait is None: A("s_waitcnt lgkmcnt(0)")
            else:
                A(f"s_waitcnt vmcnt({wait}) lgkmcnt(0)")
                A("s_barrier")
            mfl = [mfma16(v(acc(mt, nt), 4), a(wr(st & 1, nt, ks), 4), a(xr(st & 1, mt, ks), 4))
                   for mt in range(4) for nt in range(NT) for ks in range(2)]
            r = reads(st + 1) if rd else []
            fill = merge(ld, r) if (ld and r) else (ld or r)
            interleave(A, mfl, fill, 0, len(mfl) - 3)
        A(f"s_waitcnt vmcnt({3*ND + NP*min(2, max(0, PF-1))})")
        A("s_barrier")
        ST(2)
        emit(A, reads(0))
        A("s_mov_b32 s42, 7")
        A.label(f"{name}_{var}_loop")
        for st in range(4): stage(st, 2 * ND + (NP if st in (1, 2, 3) else 0), dma(st) + (pf if st == 0 else []))
        A("s_sub_u32 s42, s42, 1")
        A("s_cmp_lg_u32 s42, 0")
        A(f"s_cbranch_scc1 {name}_{var}_loop")
        A.label(f"{name}_{var}_tail")
        ST(3)
        if var == "o":
            stage(0, 2 * ND, []); stage(1, ND, []); stage(2, 0, []); stage(3, None, [], rd=False)
            ST(4)
            srd(A, 16, 6, 7, WS_P, SZ_P)
            A(f"""
            s_lshl_b32 s33, s30, 7
            s_lshl_b32 s34, s31, 3
            s_add_u32 s33, s33, s34
            s_lshl_b32 s34, s21, 2
            s_add_u32 s33, s33, s34
            s_mul_i32 s33, s33, 40
            s_mul_i32 s34, s32, 10
            s_add_u32 s33, s33, s34
            s_add_u32 s33, s33, s41
            s_lshl_b32 s33, s33, 10
            """)
            for mt in range(4):
                A(f"s_add_u32 s34, s33, {mt*40960}")
                A(f"s_add_u32 s35, s33, {mt*40960+4096}")
                for nt in range(5):
                    A(f"buffer_store_dwordx4 {v(acc(mt, nt), 4)}, v26, s[16:19], {'s34' if nt < 4 else 's35'} offen offset:{(nt&3)*1024}")
            A(f"s_branch {name}_fin")
        else:
            pre = Asm()
            srd(pre, 16, 6, 7, WS_Z1, SZ_Z)
            srd(pre, 44, 38, 39, 0, 4096)
            pre(f"""
            s_lshl_b32 s33, s31, 3
            s_lshl_b32 s34, s21, 2
            s_add_u32 s33, s33, s34
            s_lshl_b32 s43, s33, 5
            s_mul_i32 s33, s33, 27
            s_lshl_b32 s34, s32, 2
            s_lshl_b32 s35, s22, 1
            s_add_u32 s34, s34, s35
            s_add_u32 s33, s33, s34
            s_lshl_b32 s33, s33, 10
            s_cmp_ge_u32 s34, 26
            s_cselect_b32 s40, 0, 1024
            v_and_b32 v1, 15, v0
            v_lshlrev_b32 v1, 1, v1
            """)
            ld = [[x.text for x in pre.blocks[0][1]]]
            for mt in range(4):
                ld.append(f"buffer_load_ushort v{150+mt}, v1, s[44:47], s43 offen offset:{mt*32}")
            for mt in range(4):
                ld.append([f"s_add_u32 s35, s33, {mt*27*1024}", f"buffer_load_dwordx4 {v(160+mt*8, 4)}, v26, s[16:19], s35 offen"])
                ld.append([f"s_add_u32 s35, s35, s40", f"buffer_load_dwordx4 {v(164+mt*8, 4)}, v26, s[16:19], s35 offen"])
            stage(0, 2 * ND, ld); stage(1, ND + 12, []); stage(2, 12, []); stage(3, None, [], rd=False)
            ST(4)
            srd(A, 16, 6, 7, WS_U, SZ_Z)
            A("s_waitcnt vmcnt(0)")
            for mt in range(4): A(f"v_lshlrev_b32 v{150+mt}, 16, v{150+mt}")
            for q in range(2):
                if q == 1:
                    A("s_cmp_eq_u32 s40, 0")
                    A(f"s_cbranch_scc1 {name}_fin")
                    A.label(f"{name}_g_q1")
                for mt in range(4):
                    r = acc(mt, 2 * q); z = 160 + mt * 8 + q * 4
                    for i in range(8): A(f"v_add_f32 v{r+i}, v{r+i}, v{150+mt}")
                    for i in range(4):
                        A(f"v_lshlrev_b32 v{32+2*i}, 16, v{z+i}")
                        A(f"v_and_b32 v{33+2*i}, 0xffff0000, v{z+i}")
                    for i in range(8): A(f"v_mul_f32 v{r+i}, v{r+i}, v{32+i}")
                    for i in range(4): A(f"v_cvt_pk_bf16_f32 v{r+i}, v{r+2*i}, v{r+2*i+1}")
                    A(f"s_add_u32 s35, s33, {mt*27*1024 + q*1024}")
                    A(f"buffer_store_dwordx4 {v(r, 4)}, v26, s[16:19], s35 offen")
    A(f"{name}_fin:")
    ST(5)
    if ST.on: A("s_waitcnt vmcnt(0)")
    ST(6)
    ST.dump(6, 7, "s20")
    A(f"{name}_end:")
    A("s_endpgm")
    A.fix_blocks()
    return f"; @launch kernel={name} grid=(256,1,1) block=(256,1,1) lds=147456", kernel_wrap(name, A.text(), 400, sgpr=102, accum=256), A

if __name__ == '__main__':
    h, t, A = k3()
    n = "k3_go_kernel"
    for p in A.check([None, f"{n}_o", f"{n}_o_loop", f"{n}_o_loop", f"{n}_o_tail"], "o")[:20]: print(p)
    for p in A.check([None, f"{n}_g", f"{n}_g_loop", f"{n}_g_loop", f"{n}_g_tail", f"{n}_g_q1"], "g")[:20]: print(p)
    for l, b in A.blocks: print(l, len(b))
```

```python
from gemm import *
import math

GELU_C0 = -2.0 * 0.7978845608028654 * 1.4426950408889634
GELU_C1 = GELU_C0 * 0.044715
QSCALE = math.log2(math.e) / math.sqrt(128.0)
THRESH = 2.0 ** 32
MOFF = 32.0
EXP = os.environ.get('EXP', '')
R = 8
SC = " sc1"
KVP = os.environ.get('KVP', '')
CTXP = os.environ.get('CTXP', ' sc1')
WST = (2, 3)
SLOT = 32768
OOB = 0x40000000

sW, sWM, sWN, sX, sJ = "s20", "s21", "s22", "s23", "s24"
sL8, sL4 = "s25", "s28"
sXO, sWO = "s26", "s27"
sT, sT2 = "s29", "s34"
sTB, sTA = "s30", "s31"
sXB, sXA = "s32", "s33"
sZX, sP1S = "s35", "s38"
sKV, sM0N, sRD = "s36", "s37", "s39"
sKO = "s56"
sHEAD, sI = "s21", "s22"
sZM, sZN = "s57", "s58"
sCNT = "s58"
S_MASK = 48
V_L16 = 4; V_RD = 5; V_T = 18; V_L = 32; V_NM = 48; V_P = 64; V_S = 80; V_ONE = 112; V_O = 128
A_Q = 0; A_K = 64; A_V = 96
V_SIG = 29
V_POLL = 30
V_DUM = 31

def texts(a_): return [x.text for x in a_.blocks[0][1]]

def ka(name="ka_kernel"):
    A = Asm()
    ST = Stamper(A, os.environ.get("STAMP") == "ka")
    spins = []
    def signal(word_sgpr_expr):
        return ["v_mov_b32 v1, 1", f"buffer_atomic_add v1, v{V_SIG}, s[60:63], {word_sgpr_expr} offen sc1"]
    nrel = [0]
    def release_signal(word):
        nrel[0] += 1
        A("s_cmp_eq_u32 s4, 1")
        A(f"s_cbranch_scc1 {name}_rel{nrel[0]}")
        A.label(f"{name}_wb{nrel[0]}")
        vmsave = A.vm; A.vm = None
        A("buffer_wbl2 sc1")
        A("s_waitcnt vmcnt(0)")
        A.vm = vmsave
        A.label(f"{name}_rel{nrel[0]}")
        emit(A, signal(word))
    poll_ld = lambda: ["v_and_b32 v2, 63, v0", "v_lshlrev_b32 v2, 2, v2", f"buffer_load_dword v{V_POLL}, v2, s[60:63], 0 offen sc1"]
    def poll_chk(tag, need, mask_lo, mask_hi):
        chk = [f"v_cmp_gt_u32 vcc, {need}, v{V_POLL}", f"s_and_b32 vcc_lo, vcc_lo, {mask_lo}", f"s_and_b32 vcc_hi, vcc_hi, {mask_hi}",
               "s_or_b32 vcc_lo, vcc_lo, vcc_hi"]
        emit(A, chk)
        A(f"s_cbranch_scc1 {name}_spin_{tag}")
        A.label(f"{name}_ret_{tag}")
        spins.append((tag, chk))

    A(f"""
    s_cmp_ge_u32 s2, 256
    s_cbranch_scc1 {name}_end
    s_load_dwordx8 s[48:55], s[0:1], 0
    s_load_dwordx2 s[56:57], s[0:1], {A_WUV}
    s_load_dwordx2 s[58:59], s[0:1], {B_WIN}
    s_load_dwordx4 s[4:7], s[0:1], {D_DBG}
    v_lshrrev_b32 v1, 6, v0
    v_readfirstlane_b32 {sW}, v1
    s_and_b32 {sX}, s2, 7
    s_lshr_b32 {sJ}, s2, 3
    v_and_b32 v{V_L16}, 63, v0
    v_lshlrev_b32 v{V_L16}, 4, v{V_L16}
    v_lshrrev_b32 v1, 5, v0
    v_and_b32 v2, 31, v0
    v_mul_u32_u24 v3, 1280, v1
    v_lshl_add_u32 v32, v2, 3, v3
    v_lshrrev_b32 v3, 1, v2
    v_lshlrev_b32 v33, 7, v3
    v_lshl_add_u32 v33, v1, 4, v33
    v_and_b32 v3, 1, v2
    v_lshl_add_u32 v33, v3, 3, v33
    v_add_u32 v33, {2*SLOT}, v33
    s_lshl_b32 s30, {sX}, 5
    s_add_u32 s30, s30, {sJ}
    s_mul_i32 s31, s30, 10240
    s_lshr_b32 {sWM}, {sW}, 1
    s_and_b32 {sWN}, {sW}, 1
    s_lshl_b32 {sL8}, {sW}, 13
    s_lshl_b32 {sL4}, {sW}, 12
    s_lshl_b32 {sXO}, {sW}, 16
    s_lshl_b32 {sWO}, {sW}, 17
    s_and_b32 s32, {sJ}, 7                ; mtile
    s_lshl_b32 s33, s32, 18
    s_bfe_u32 s35, {sJ}, 0x10003          ; hp
    s_lshl_b32 s36, {sX}, 1
    s_add_u32 s35, s35, s36
    s_lshl_b32 s36, s35, 9
    s_sub_u32 s37, {512*8192}, s36
    """)
    ST()
    setup_xrow_dma(A, 5, 1024)
    setup_w_dma(A, 9, 8192, 256, 'nat')
    A("s_waitcnt lgkmcnt(0)")
    srd(A, 40, 48, 49, 0, SZ_XN)
    vm = VM(); A.vm = vm
    for k in range(5): A(f"buffer_load_dwordx2 {v(34+2*k,2)}, v32, s[40:43], s31 offen offset:{k*256} ; @lnx")
    srd(A, 8, 50, 51, "s33", 256 * 1024)
    A(f"s_cmp_ge_u32 {sJ}, 16")
    A("s_cselect_b32 s12, s56, s54")
    A("s_cselect_b32 s13, s57, s55")
    srd(A, 12, 12, 13, "s36", "s37")
    xslot = lambda st: (2 + (st + 1) % 3) * SLOT
    def wdma(st):
        return tag(dma_group((sL8, (st & 1) * SLOT), (sWO, st * 64 * 8192), 12, [9, 10, 11, 12], sT) +
                dma_group((sL8, (st & 1) * SLOT + 4096), (sWO, st * 64 * 8192), 12, [13, 14, 15, 16], sT), f"w{st}")
    def xdma(st):
        return tag(dma_group((sL8, xslot(st)), (sXO, st * 128), 8, [5, 6, 7, 8], sT) +
                dma_group((sL8, xslot(st) + 4096), (sXO, st * 128 + 32 * 1024), 8, [5, 6, 7, 8], sT), f"x{st}")
    for f in (wdma(0), xdma(0)): emit(A, f)
    if os.environ.get("CW", "1") == "1":
        A(f"""
        s_getpc_b64 s[38:39]
        {name}_pc:
        s_lshl_b32 s34, {sJ}, 12
        s_lshl_b32 s3, {sW}, 10
        s_add_u32 s34, s34, s3
        v_and_b32 v1, 7, v0
        v_lshlrev_b32 v1, 7, v1
        v_add_u32 v1, s34, v1
        v_min_u32 v1, {name}_last-{name}_pc, v1
        global_load_dword a255, v1, s[38:39] ; @cw
        """)
    ST()
    U = Asm(); t1, t2 = "s34", "s38"
    srd(U, 60, 4, 5, 0, 256)
    srd(U, 16, 6, 7, WS_KV, SZ_KV)
    srd(U, 48, 6, 7, WS_XN, SZ_XN)
    U(f"""
    v_cmp_eq_u32 vcc, 0, v0
    v_mov_b32 v1, {OOB}
    v_cndmask_b32 v{V_SIG}, v1, 0, vcc
    s_getreg_b32 {t1}, hwreg(HW_REG_XCC_ID, 0, 4)
    s_lshl_b32 {t1}, 1, {t1}
    v_mov_b32 v1, {t1}
    s_lshl_b32 {t1}, {sX}, 2
    buffer_atomic_or v1, v{V_SIG}, s[60:63], {t1} offen offset:192 sc1
    s_lshl_b32 {sKO}, s35, 1
    s_add_u32 {sKO}, {sKO}, {sWN}
    s_lshl_b32 {sKO}, {sKO}, 3
    s_add_u32 {sKO}, {sKO}, s32
    s_lshl_b32 {sKO}, {sKO}, 1
    s_add_u32 {sKO}, {sKO}, {sWM}
    s_lshl_b32 {sKO}, {sKO}, 16
    s_lshl_b32 s3, s35, 2
    s_add_u32 s3, s3, 64
    s_lshl_b32 {t1}, {sWM}, 14
    s_add_u32 {t1}, {t1}, {2*SLOT}
    """)
    setup_xrow_read(U, 17, t1)
    U(f"v_add_u32 v19, {2*SLOT}, v17")
    U(f"v_add_u32 v20, {2*SLOT}, v18")
    U(f"s_lshl_b32 {t1}, {sWN}, 3")
    setup_w_read(U, 21, 256, 'nat', "0", t1)
    U(f"""
    s_lshr_b32 {t1}, s30, 1
    s_mul_i32 {t1}, {t1}, 20480
    s_and_b32 s39, s30, 1
    s_lshl_b32 s39, s39, 7
    s_add_u32 s39, s39, {t1}
    s_lshl_b32 {t1}, {sW}, 11
    s_add_u32 s39, s39, {t1}              ; xnF offset of this wave's first piece
    s_lshr_b32 s55, s30, 4
    s_lshl_b32 s55, s55, 2
    v_bfe_u32 v1, v0, 5, 1
    v_bfe_u32 v2, v0, 3, 2
    v_and_b32 v3, 7, v0
    v_lshlrev_b32 v3, 4, v3
    v_lshl_add_u32 v3, v2, 8, v3
    v_lshl_add_u32 v{V_DUM}, v1, 10, v3
    v_lshlrev_b32 v{V_POLL}, 4, v0
    v_add_u32 v{V_POLL}, {2*SLOT}, v{V_POLL}
    s_lshl_b32 {sHEAD}, {sX}, 2
    s_and_b32 {t1}, {sJ}, 3
    s_add_u32 {sHEAD}, {sHEAD}, {t1}
    s_lshr_b32 {sI}, {sJ}, 2
    s_lshl_b32 {t1}, {sHEAD}, 8
    s_sub_u32 {t2}, {640*8192}, {t1}
    """)
    srd(U, 44, 52, 53, t1, t2)
    U(f"""
    s_lshr_b32 s37, {sHEAD}, 1
    s_min_u32 {t1}, s37, 13
    s_lshl_b32 {t1}, {t1}, 8
    s_sub_u32 {t2}, {640*3456}, {t1}
    s_cmp_ge_u32 s37, 14
    s_cselect_b32 {t2}, 0, {t2}
    """)
    srd(U, 40, 58, 59, t1, t2)
    U(f"""
    s_mov_b32 {sZN}, s37
    s_sub_u32 {t1}, 15, {sI}
    s_lshl_b32 {sTB}, {t1}, 3
    s_lshl_b32 {t2}, {sW}, 1
    s_add_u32 {sTB}, {sTB}, {t2}
    s_lshl_b32 {sTA}, {sI}, 3
    s_add_u32 {sTA}, {sTA}, {t2}
    s_bitcmp1_b32 {sHEAD}, 0
    s_cselect_b32 {sZM}, {sTA}, {sTB}     ; first t tile of the z rows of this wave (odd heads: block A)
    s_cselect_b32 {sXA}, {sTB}, {sTA}
    s_mul_i32 {sXB}, {sZM}, 20480         ; x tiles 0,1
    s_mul_i32 {sXA}, {sXA}, 20480         ; x tiles 2,3
    s_lshl_b32 {sKV}, {t1}, 2
    s_add_u32 {sKV}, {sKV}, 3
    s_lshr_b32 {t1}, {sW}, 1
    s_add_u32 {sKV}, {sKV}, {t1}
    s_lshl_b32 {sKV}, {sKV}, 14
    s_add_u32 {sKV}, {sKV}, {sL4}
    s_mul_i32 s54, {sW}, {16*3456}
    """)
    interleave(A, texts(U), wdma(1))
    A(f"s_waitcnt vmcnt({vm.count('lnx')})")
    ST()
    def red32(A, r, t):
        for m in ("quad_perm:[1,0,3,2]", "quad_perm:[2,3,0,1]", "row_half_mirror", "row_mirror"):
            A(f"v_add_f32_dpp v{r}, v{r}, v{r} {m} row_mask:0xf bank_mask:0xf")
        swap_reduce(A, "v_add_f32", r, t, 16)
    U = Asm()
    layernorm_regs(U, 34, 10, 48, 640, red32)
    interleave(A, texts(U), xdma(1), 0, 150)
    for k in range(5): A(f"ds_write_b64 v33, {v(34+2*k,2)} offset:{k*2048}")
    lnrd = [f"ds_read_b128 {a(224+4*n,4)}, v{V_POLL} offset:{n*4096}" for n in range(3)]
    lnst = [f"buffer_store_dwordx4 {a(224,4)}, v{V_DUM}, s[48:51], s39 offen{SC}",
            ["s_add_u32 s39, s39, 8192", f"buffer_store_dwordx4 {a(228,4)}, v{V_DUM}, s[48:51], s39 offen{SC}"],
            ["s_add_u32 s39, s39, 8192", f"s_cmp_ge_u32 {sW}, 2", f"s_cselect_b32 s39, {OOB}, s39",
             f"buffer_store_dwordx4 {a(232,4)}, v{V_DUM}, s[48:51], s39 offen{SC}"]]

    accreg_i = lambda i: ('v', 32 + 4 * i) if i < 56 else ('a', 4 * (i - 56))
    accreg = lambda i: (v if i < 56 else a)(accreg_i(i)[1], 4)
    wreg = lambda par, nt, ks: 32 + par * 64 + (ks * 8 + nt) * 4
    xreg = lambda mt, ks: 160 + (mt * 2 + ks) * 4
    def xreads(st, half):
        sl = xslot(st) - 2 * SLOT
        base = 17 if sl < 2 * SLOT else 19
        return [f"ds_read_b128 {a(xreg(mt, ks), 4)}, v{base+ks} offset:{(sl % (2*SLOT)) + mt*2048}"
                for mt in range(4 * half, 4 * half + 4) for ks in range(2)]
    def wreads(st):
        return w_reads(lambda t, ks: ('a', wreg(st & 1, t, ks)), 21, 256, 'nat', (st & 1) * SLOT)
    def pfill(s_):
        o = (s_ % 5) * SLOT
        return tag(dma_group((sL4, o + 16384), ("s54", s_ * 64 * 3456), 40, [5, 6, 7, 8], sT) +
                   dma_group((sL4, o), (sWO, s_ * 64 * 8192), 44, [9, 10, 11, 12], sT), f"p{s_}")
    def preads(s_, z):
        sl = s_ % 5
        r = w_reads(lambda t, ks: ('a', wreg(z, t, ks)), 21, 128, 'nat', (sl & 1) * SLOT + z * 16384, NT=8)
        if not z and sl in (2, 4): r = [[f"v_add_u32 v{21+t}, 65536, v{21+t}" for t in range(8)]] + r
        if not z and s_ == 5: r = [[f"v_subrev_u32 v{21+t}, 131072, v{21+t}" for t in range(8)]] + r
        return r
    QXR = [224, 160, 192]
    def qxload(s_):
        out = []
        for qt in range(4):
            r = QXR[s_ % 3] + qt * 8
            out.append([f"s_add_u32 {sT2}, {sXB if qt < 2 else sXA}, {(qt&1)*20480 + s_*2048}",
                        f"buffer_load_dwordx4 {a(r,4)}, v{V_L16}, s[48:51], {sT2} offen{SC}"])
            out.append(f"buffer_load_dwordx4 {a(r+4,4)}, v{V_L16}, s[48:51], {sT2} offen offset:1024{SC}")
        return tag(out, f"qx{s_}")
    def kvstore(p, tmp=224):
        out = []
        if 2 * p < 56: r = 32 + 8 * p
        else:
            r = tmp + 8 * (p - 28)
            out += [f"v_accvgpr_read_b32 v{r+i}, a{8*(p-28)+i}" for i in range(8)]
        out += [f"v_cvt_pk_bf16_f32 v{r+i}, v{r+2*i}, v{r+2*i+1}" for i in range(4)]
        off = (p >> 3) * 16384 + (p & 7) * 1024
        st_ = f"buffer_store_dwordx4 {v(r,4)}, v{V_L16}, s[16:19], s53 offen offset:{(p&3)*1024}{KVP}"
        out.append([f"s_add_u32 s53, {sKO}, {off}", st_] if (p & 3) == 0 else st_)
        return out
    ST()
    A(f"s_waitcnt vmcnt({vm.count('w0', 'x0')}) lgkmcnt(0)")
    A("s_barrier")
    ST()
    emit(A, wreads(0)); emit(A, xreads(0, 0)); emit(A, lnrd)
    A(f"s_cmp_ge_u32 {sJ}, 16")
    A(f"s_cbranch_scc1 {name}_v")
    vm0 = list(vm.ops)
    for variant in ("k", "v"):
        A.label(f"{name}_{variant}")
        vm.ops = list(vm0)
        if variant == "v": A(f"s_add_u32 {sKO}, {sKO}, 8192")
        idx = (lambda mt, nt: mt * 8 + nt) if variant == "k" else (lambda mt, nt: (mt >> 1) * 16 + nt * 2 + (mt & 1))
        def mf(st, half):
            out = []
            for mt in range(4 * half, 4 * half + 4):
                for nt in range(8):
                    for ks in range(2):
                        w = a(wreg(st & 1, nt, ks), 4); x = a(xreg(mt, ks), 4)
                        d = accreg(idx(mt, nt)); c = "0" if (st == 0 and ks == 0) else None
                        out.append(mfma16(d, w, x, c) if variant == "k" else mfma16(d, x, w, c))
            return out
        for st in range(8):
            if st == 7:
                A(f"s_waitcnt vmcnt({vm.count('pollx')}) lgkmcnt(0)")
                A("s_barrier")
                poll_chk(f"xn{variant}", 16, "0xffff", "0")
                A(f"s_add_u32 {sT}, {sX}, 48")
                A(f"v_readlane_b32 s4, v{V_POLL}, {sT}")
                A("s_bcnt1_i32_b32 s4, s4")
            else:
                A("s_waitcnt lgkmcnt(0)")
                if st != 1: A("s_barrier")
            ld = []; misc = []
            if st == 0: ld = lnst + xdma(2)
            if st <= 5 and st != 1: ld += wdma(st + 2)
            if st == 5:
                l = Asm(); setup_w_dma(l, 5, 3456, 128, 'nat'); misc = texts(l)
            if st == 6: ld = pfill(0)
            if st == 7:
                ld = merge(pfill(1), qxload(0))
                l = Asm(); setup_w_read(l, 21, 128, 'nat', "0", "0", NT=8); misc = texts(l)
            fill = merge(*[x for x in (ld, xreads(st, 1) + [[]] * 8, misc) if x])
            interleave(A, mf(st, 0), fill, 0, 62)
            ST({0: 5, 1: 7, 7: 9, 2: 24, 3: 26, 4: 28, 5: 30}[st]) if st != 6 and not ('qz' in EXP) else None
            if st == 1: A("s_waitcnt vmcnt(0) lgkmcnt(0)")
            elif st < 7: A(f"s_waitcnt vmcnt({vm.count(f'w{st+1}', f'x{st+1}')}) lgkmcnt(0)")
            else: A(f"s_waitcnt vmcnt({vm.count('p0')}) lgkmcnt(0)")
            A("s_barrier")
            ST({0: 6, 1: 8, 7: 10, 2: 25, 3: 27, 4: 29, 5: 31}[st]) if st != 6 and not ('qz' in EXP) else None
            ld = []
            if st == 1:
                ld += [signal("s55")]
                ld += wdma(3)
            if st in WST:
                pitch, n, d = ((8192, 20, 44), (3456, 10, 40))[WST.index(st)]
                w_ = ["v_bfe_u32 v1, v0, 1, 5", f"v_cmp_gt_u32 vcc, {n}, v1", f"v_mul_u32_u24 v1, {pitch}, v1", "v_and_b32 v2, 1, v0",
                      "v_lshl_add_u32 v1, v2, 7, v1", f"v_mov_b32 v2, {OOB}", "v_cndmask_b32 v1, v2, v1, vcc"]
                if d == 44: w_ += [f"s_lshl_b32 {sT2}, {sI}, 2"]
                else: w_ += [f"s_and_b32 {sT2}, {sHEAD}, 1", f"s_lshl_b32 s39, {sI}, 1", f"s_add_u32 {sT2}, {sT2}, s39", f"s_lshl_b32 {sT2}, {sT2}, 2"]
                w_ += [f"s_add_u32 {sT2}, {sT2}, {sW}", f"s_mul_i32 {sT2}, {sT2}, {n*pitch}",
                       f"buffer_load_dword v{V_DUM}, v1, s[{d}:{d+3}], {sT2} offen"]
                ld += [w_[:7], w_[7:]]
            if st == 6:
                ld += tag([poll_ld()], 'pollx')
            if st == 5:
                D = 8192 - 3456
                ld += [["v_bfe_u32 v1, v0, 4, 2", f"v_mul_u32_u24 v1, {D}, v1"] +
                       sum([[f"v_add_u32 v{9+k}, v{5+k}, v1"] + ([f"v_add_u32 v{9+k}, {4*k*D}, v{9+k}"] if k else []) for k in range(4)], [])]
            if st <= 4: ld += xdma(st + 3)
            elif st < 7: ld += pfill(st - 3)
            if st < 7:
                fill = merge(ld, xreads(st + 1, 0) + wreads(st + 1))
            else:
                stores = []
                for p in range(16): stores += kvstore(p)
                fill = merge(stores, pfill(4), qxload(1), preads(0, 0))
            interleave(A, mf(st, 1), fill, 0, 60)
        if variant == "k": A(f"s_branch {name}_z")
    A.label(f"{name}_z")
    ST(11)
    zacc = lambda tt, e: 160 + (tt * 8 + e) * 4
    qacc = lambda qt, e: 32 + (qt * 8 + e) * 4
    NS = 10
    A(f"s_lshl_b32 {sT}, {sHEAD}, 20")
    A(f"s_add_u32 {sT}, {sT}, {WS_KV}")
    srd(A, 8, 6, 7, sT, MB)
    A(f"s_lshr_b32 {sT}, {sHEAD}, 1")
    A(f"s_add_u32 {sT}, {sT}, 16")
    A(f"s_lshl_b32 s52, 1, {sT}")
    def kvld():
        return [f"buffer_load_dwordx4 v{V_L16}, s[8:11], {sKV} offen offset:{k*1024}{SC} lds" for k in range(4)]
    def kvdma(slot):
        ld = kvld()
        return [[f"s_add_u32 m0, {sL4}, {slot*16384}", ld[0]], ld[1], ld[2], [ld[3], f"s_sub_u32 {sKV}, {sKV}, 16384"]]
    carry = []
    for st in range(NS):
        if 'qz' in EXP: ST(3 * st + 1)
        A(f"s_waitcnt vmcnt({vm.count(f'qx{st}')}) lgkmcnt(0)")
        if 'qz' in EXP: ST(3 * st + 2)
        xl = qxload(st + 2) if st + 2 < NS else []
        stores = []
        if st < 2:
            for p in range(16 + 8 * st, 24 + 8 * st): stores += kvstore(p)
        ldq = merge(carry, xl[:6]) if (carry and xl) else (carry or xl[:6])
        if st == 6: ldq = ldq[:3] + tag([poll_ld()], 'pollk') + ldq[3:]
        if st == 2: ldq = ldq + [[]] * 8
        mfl = [mfma16(v(qacc(qt, e), 4), a(wreg(0, e, ks), 4), a(QXR[st % 3] + qt * 8 + ks * 4, 4), "0" if (st == 0 and ks == 0) else None)
               for qt in range(4) for e in range(8) for ks in range(2)]
        interleave(A, mfl, merge(*[x for x in (ldq, stores, preads(st, 1)) if x]), 0, 60)
        if 'qz' in EXP: ST(3 * st + 3)
        if st == 2: A("s_waitcnt vmcnt(0) lgkmcnt(0)")
        elif st == 6: A(f"s_waitcnt vmcnt({vm.count('p7', 'pollk')}) lgkmcnt(0)")
        elif st + 1 < NS: A(f"s_waitcnt vmcnt({vm.count(f'p{st+1}')}) lgkmcnt(0)")
        else: A("s_waitcnt lgkmcnt(0)")
        if st + 1 < NS: A("s_barrier")
        if st == 2: release_signal("s3")
        if st == 6: poll_chk("kv", 16, "s52", "0")
        per = pfill(st + 5) if st < 5 else (kvdma(2 * (st - 6)) + kvdma(2 * (st - 6) + 1) if 6 <= st <= 8 else [])
        carry = per[4:]
        ldz = merge(per[:4], xl[6:]) if (per and xl) else (per[:4] or xl[6:])
        mfl = [mfma16(v(zacc(tt, e), 4), a(wreg(1, e, ks), 4), a(QXR[st % 3] + tt * 8 + ks * 4, 4), "0" if (st == 0 and ks == 0) else None)
               for tt in range(2) for e in range(8) for ks in range(2)]
        rd = preads(st + 1, 0) if st + 1 < NS else []
        interleave(A, mfl, merge(*[x for x in (ldz, rd) if x]) if (ldz or rd) else [], 0, 29)
    if 'qz' in EXP: ST(31); ST.on = False; STD = Stamper(A, True)
    ST(12)
    A(f"s_load_dwordx2 s[16:17], s[0:1], {A_WO}")
    A(f"s_load_dwordx2 s[44:45], s[0:1], {B_WSP}")
    A(f"s_load_dwordx2 s[48:49], s[0:1], {B_WOUT}")
    G = Asm()
    G(f"s_mov_b32 s52, {fbits(GELU_C1)}")
    G(f"v_mov_b32 v3, {fbits(GELU_C0)}")
    for b in range(0, 64, 8):
        rs = [160 + b + i for i in range(8)]
        ts = [224 + i for i in range(8)]
        for r, t in zip(rs, ts): G(f"v_mul_f32 v{t}, v{r}, v{r}")
        for r, t in zip(rs, ts): G(f"v_fma_f32 v{t}, v{t}, s52, v3")
        for r, t in zip(rs, ts): G(f"v_mul_f32 v{t}, v{t}, v{r}")
        for r, t in zip(rs, ts): G(f"v_exp_f32 v{t}, v{t}")
        for r, t in zip(rs, ts): G(f"v_add_f32 v{t}, 1.0, v{t}")
        for r, t in zip(rs, ts): G(f"v_rcp_f32 v{t}, v{t}")
        for r, t in zip(rs, ts): G(f"v_mul_f32 v{r}, v{r}, v{t}")
        for i in range(4): G(f"v_cvt_pk_bf16_f32 v{160+b+i}, v{160+b+2*i}, v{160+b+2*i+1}")
    emit(A, texts(G))
    ST(13)
    srd(A, 12, 6, 7, WS_Z1, SZ_Z)
    srd(A, 40, 6, 7, WS_Z2, SZ_Z)
    A(f"""
    v_and_b32 v1, 15, v0
    v_mul_u32_u24 v1, 1728, v1
    v_bfe_u32 v2, v0, 4, 1
    v_lshl_add_u32 v1, v2, 5, v1
    v_bfe_u32 v2, v0, 5, 1
    v_lshl_add_u32 v2, v2, 4, v1
    s_mov_b32 s52, {sZM}                  ; first t tile
    s_lshl_b32 s53, {sZN}, 2              ; first f step
    """)
    A.vm = None
    for q in range(4):
        A(f"s_add_u32 {sT}, s53, {q}")
        A(f"s_cmp_ge_u32 {sT}, 27")
        A(f"s_cbranch_scc1 {name}_zs2_{q}")
        A.label(f"{name}_zs1_{q}")
        A(f"s_mul_i32 {sT2}, s52, 27")
        A(f"s_add_u32 {sT2}, {sT2}, {sT}")
        A(f"s_lshl_b32 {sT2}, {sT2}, 10")
        for tt in range(2):
            if tt: A(f"s_add_u32 {sT2}, {sT2}, {27*1024}")
            A(f"buffer_store_dwordx4 {v(zacc(tt, 2*q), 4)}, v{V_L16}, s[12:15], {sT2} offen")
        A(f"s_branch {name}_zs3_{q}")
        A.label(f"{name}_zs2_{q}")
        A(f"s_mul_i32 {sT2}, s52, {16*1728}")
        A(f"s_cmp_ge_u32 {sT}, 54")
        A(f"s_cselect_b32 {sT2}, {OOB}, {sT2}")
        A(f"s_sub_u32 {sT}, {sT}, 27")
        A(f"s_lshl_b32 {sT}, {sT}, 6")
        A(f"s_add_u32 {sT2}, {sT2}, {sT}")
        for tt in range(2):
            r = zacc(tt, 2 * q)
            A(f"v_permlane16_swap_b32 v{r}, v{r+2}")
            A(f"v_permlane16_swap_b32 v{r+1}, v{r+3}")
            if tt: A(f"s_add_u32 {sT2}, {sT2}, {16*1728}")
            A(f"buffer_store_dwordx4 {v(r, 4)}, v2, s[40:43], {sT2} offen{SC}")
        A.label(f"{name}_zs3_{q}")
    vm.add('zs', 8); A.vm = vm
    A(f"s_lshr_b32 s3, {sZM}, 3")
    A("s_lshl_b32 s3, s3, 2")
    A("s_add_u32 s3, s3, 128")
    A(f"s_cmp_ge_u32 {sZN}, 14")
    A(f"s_cselect_b32 s3, {OOB}, s3")
    ST(14)
    A(f"s_mov_b32 {sT}, {fbits(QSCALE)}")
    for r in range(32, 160, 8):
        for i in range(8): A(f"v_mul_f32 v{r+i}, {sT}, v{r+i}")
        for i in range(4): A(f"v_cvt_pk_bf16_f32 v{r+i}, v{r+2*i}, v{r+2*i+1}")
    A(f"s_bitcmp1_b32 {sHEAD}, 0")
    A(f"s_cbranch_scc1 {name}_qc1")
    for odd in range(2):
        A.label(f"{name}_qc{odd}")
        for qt in range(4):
            for ds in range(4):
                for i in range(4): A(f"v_accvgpr_write_b32 a{A_Q + ((qt ^ (2*odd))*4+ds)*4 + i}, v{qacc(qt, 2*ds)+i}")
        if not odd: A(f"s_branch {name}_q")
    A.label(f"{name}_q")
    ST(15)
    A("s_waitcnt lgkmcnt(0)")
    A("s_mov_b32 s12, s48")
    A("s_mov_b32 s13, s49")
    for i in range(128): A(f"v_mov_b32 v{V_O+i}, 0")
    for i in range(16): A(f"v_mov_b32 v{V_L+i}, 0")
    for i in range(4): A(f"v_mov_b32 v{V_ONE+i}, 0x3f803f80")
    A("v_and_b32 v1, 15, v0")
    A("v_bfe_u32 v2, v0, 4, 2")
    A("v_lshlrev_b32 v2, 2, v2")
    for r in range(4):
        A(f"v_add_u32 v3, {r}, v2")
        A(f"v_cmp_le_u32 s[{S_MASK+2*r}:{S_MASK+2*r+1}], v3, v1")
    A(f"""
    s_mov_b32 s46, {2048*4096}
    s_mov_b32 s47, 0x20000
    s_lshl_b32 s14, s2, 2
    s_add_u32 s14, s14, {sW}
    s_sub_u32 s14, s14, 512
    s_lshl_b32 s15, s14, 14
    s_cmp_ge_u32 s14, 320
    s_cselect_b32 s16, s12, s16
    s_cselect_b32 s17, s13, s17
    s_mov_b32 s18, {4096*1280}
    s_cselect_b32 s18, {864*1280}, s18
    s_mov_b32 s19, 0x20000
    s_cselect_b32 s14, {320*16384}, 0
    s_sub_u32 s14, s15, s14
    s_cmp_lt_u32 s2, 128
    s_cselect_b32 s14, {OOB}, s14
    s_cselect_b32 s15, {OOB}, s15
    v_lshlrev_b32 v6, 3, v{V_L16}
    v_add_u32 v7, 8192, v6
    s_mov_b32 s56, {fbits(THRESH)}
    s_mov_b32 s57, 0xff800000
    s_waitcnt vmcnt(0)
    s_barrier
    """)
    emit(A, signal("s3"))
    ST(16)
    warm = [f"buffer_load_dword v{V_DUM}, v{r}, s[{d}:{d+3}], {o} offen" for d, o in ((44, "s15"), (16, "s14")) for r in (6, 7)]

    S = lambda qt, t, r=0: V_S + qt * 8 + t * 4 + r
    def qk(qt, mode):
        out = []
        for t in range(2):
            if mode == 'first' and (qt & 1) == 0 and t == 1: continue
            for ds in range(4):
                c = None
                if ds == 0: c = "0" if mode == 'first' else v(V_NM + 4 * qt, 4)
                out.append((mfma16(v(S(qt, t), 4), a(A_K + (t * 4 + ds) * 4, 4), a(A_Q + (qt * 4 + ds) * 4, 4), c), ('k', t * 4 + ds)))
        return out
    def pv(qt):
        out = [(mfma16(v(V_O + (qt * 8 + e) * 4, 4), a(A_V + e * 4, 4), v(V_P + 4 * qt, 4)), ('v', e)) for e in range(8)]
        return [(mfma16(v(V_L + 4 * qt, 4), v(V_ONE, 4), v(V_P + 4 * qt, 4)), ('one', 0))] + out
    exps = lambda qt, n=8: [f"v_exp_f32 v{S(qt,0)+i}, v{S(qt,0)+i}" for i in range(n)]
    cvts = lambda qt, n=8: [f"v_cvt_pk_bf16_f32 v{V_P+4*qt+j}, v{S(qt,0)+2*j}, v{S(qt,0)+2*j+1}" for j in range(n // 2)]
    def rowmax(qt, n, d, t):
        s0 = S(qt, 0)
        out = [f"v_max3_f32 v{d}, v{s0}, v{s0+1}, v{s0+2}"]
        if n == 4: out.append(f"v_max_f32 v{d}, v{d}, v{s0+3}")
        else:
            out += [f"v_max3_f32 v{d}, v{d}, v{s0+3}, v{s0+4}", f"v_max3_f32 v{d}, v{d}, v{s0+5}, v{s0+6}", f"v_max_f32 v{d}, v{d}, v{s0+7}"]
        for wh in (16, 32):
            out += [f"v_mov_b32 v{t}, v{d}", f"v_permlane{wh}_swap_b32 v{t}, v{d}", f"v_max_f32 v{d}, v{d}, v{t}"]
        return out
    def mask(qt, T):
        u = qt & 1
        return [f"v_mov_b32 v{T}, s57"] + [f"v_cndmask_b32 v{S(qt,u,r)}, v{T}, v{S(qt,u,r)}, s[{S_MASK+2*r}:{S_MASK+2*r+1}]" for r in range(4)]
    def sm_diag(qt):
        u = qt & 1
        n = 4 if u == 0 else 8
        T = V_T
        out = mask(qt, T) + rowmax(qt, n, T, T + 1)
        out.append(f"v_add_f32 v{T}, {fbits(MOFF)}, v{T}")
        for i in range(n): out.append(f"v_sub_f32 v{S(qt,0)+i}, v{S(qt,0)+i}, v{T}")
        for r in range(4): out.append(f"v_sub_f32 v{V_NM+4*qt+r}, 0, v{T}")
        out += exps(qt, n) + cvts(qt, n)
        if u == 0: out += [f"v_mov_b32 v{V_P+4*qt+2}, 0", f"v_mov_b32 v{V_P+4*qt+3}, 0"]
        return out
    def phase(mf, steady, diag, after, pin):
        n = len(mf)
        lastpos = {}
        for i, (m, k) in enumerate(mf): lastpos[k] = i
        pinned = {}; loose = []
        for k, ins in after.items():
            if k in lastpos: pinned.setdefault(lastpos[k], []).extend(ins)
            else: loose.extend(ins)
        if n == 0:
            emit(A, loose); emit(A, [x for f, x in pin]); return
        for f, x in pin: pinned.setdefault(int(f * n), []).append(x)
        es = []; cs = []
        for qt in steady:
            base = len(es)
            es += [(x, []) for x in exps(qt)]
            cs += [(x, [(0, base + 2 * j), (0, base + 2 * j + 1)]) for j, x in enumerate(cvts(qt))]
        streams = [es, cs, [(x, []) for qt in diag for x in sm_diag(qt)], [(x, []) for x in loose]]
        sched(A, [m for m, k in mf], pinned, streams)
    ncond = [0]
    def top(sync):
        if sync == 'never': return
        if sync == 'cond':
            ncond[0] += 1
            A(f"s_bitcmp1_b32 {sRD}, 14")
            A(f"s_cbranch_scc1 {name}_nb{ncond[0]}")
            A.label(f"{name}_b{ncond[0]}")
        A(f"s_waitcnt vmcnt({4*(R-4)}) lgkmcnt(0)")
        A("s_barrier")
        if sync == 'cond': A.label(f"{name}_nb{ncond[0]}")
    ptr = [f"s_mov_b32 m0, {sM0N}", f"s_add_u32 {sM0N}, {sRD}, {sL4}", f"s_add_u32 {sRD}, {sRD}, 16384", f"s_and_b32 {sRD}, {sRD}, {R*16384-1}"]
    def iteration(modes, tail=[], sync='cond'):
        top(sync)
        kr = {('k', j): [f"ds_read_b128 {a(A_K+4*j,4)}, v{V_RD} offset:{j*1024}"] for j in range(8)}
        vr = {('v', e): [f"ds_read_b128 {a(A_V+4*e,4)}, v{V_RD} offset:{8192+e*1024}"] for e in range(8)}
        mq, mp, st, dg = [], [], [], []
        for st_, md in enumerate(modes):
            q0, q1 = 2 * st_, 2 * st_ + 1
            if md == 'steady': mq += qk(q1, 'n'); mp += pv(q1); st.append(q0)
            elif md == 'diag': mq += qk(q1, 'first'); dg.append(q0)
        other = dict(kr)
        if modes[0] != 'pre': other.update(vr)
        phase(mq + mp, st, dg, other, [])
        mq, mp, st, dg = [], [], [], []
        for st_, md in enumerate(modes):
            q0, q1 = 2 * st_, 2 * st_ + 1
            if md == 'steady': mq += qk(q0, 'n'); mp += pv(q0); st.append(q1)
            elif md == 'diag': mq += qk(q0, 'n'); mp += pv(q0); dg.append(q1)
            elif md == 'pre': mq += qk(q0, 'first')
        A("s_waitcnt lgkmcnt(%d)" % (8 if modes[0] == 'steady' else 0))
        mfl = mq + mp
        if mp: mfl[len(mq) + 1] = ("s_waitcnt lgkmcnt(0)\n" + mfl[len(mq) + 1][0], mfl[len(mq) + 1][1])
        ld = kvld()
        pin = [(0.05, ld[0]), (0.28, ld[1]), (0.51, ld[2]), (0.74, ld[3]), (0.80, [f"s_sub_u32 {sKV}, {sKV}, 16384", ptr[0]]),
               (0.86, ptr[1:3]), (0.92, [ptr[3], f"v_add_u32 v{V_RD}, {sRD}, v{V_L16}"]), (0.99, tail)]
        phase(mfl, st, dg, {}, pin)
    def loop(tag, modes, nxt):
        A(f"s_bitcmp1_b32 {sRD}, 14")
        A(f"s_cbranch_scc1 {name}_{tag}1")
        A.label(f"{name}_{tag}")
        iteration(modes, [f"s_sub_u32 {sCNT}, {sCNT}, 1"], 'always')
        A(f"s_cbranch_scc1 {name}_{nxt}")
        A.label(f"{name}_{tag}1")
        iteration(modes, [f"s_sub_u32 {sCNT}, {sCNT}, 1"], 'never')
        A(f"s_cbranch_scc0 {name}_{tag}")
    A(f"s_mov_b32 {sRD}, 0")
    A(f"s_add_u32 m0, {sL4}, {6*16384}")
    A(f"s_add_u32 {sM0N}, {sL4}, {7*16384}")
    A(f"v_mov_b32 v{V_RD}, v{V_L16}")
    A(f"s_sub_u32 {sCNT}, 3, {sW}")
    A.label(f"{name}_idle")
    A(f"s_cmp_eq_u32 {sCNT}, 0")
    A(f"s_cbranch_scc1 {name}_preB")
    A.label(f"{name}_idle_b")
    top('cond')
    emit(A, kvld() + [f"s_sub_u32 {sKV}, {sKV}, 16384"] + ptr + [f"v_add_u32 v{V_RD}, {sRD}, v{V_L16}"])
    A(f"s_sub_u32 {sCNT}, {sCNT}, 1")
    A(f"s_branch {name}_idle")
    A.label(f"{name}_preB")
    iteration(['pre', 'off'])
    iteration(['diag', 'off'])
    A(f"s_lshl_b32 {sCNT}, {sI}, 3")
    A(f"s_sub_u32 {sCNT}, 57, {sCNT}")
    ST(17)
    loop("loopB", ['steady', 'off'], "preA")
    A.label(f"{name}_preA")
    ST(18)
    iteration(['steady', 'pre'])
    iteration(['steady', 'diag'], warm)
    ST(19)
    A(f"s_lshl_b32 {sCNT}, {sI}, 2")
    A(f"s_add_u32 {sCNT}, {sCNT}, {sW}")
    A(f"s_sub_u32 {sCNT}, {sCNT}, 1")
    A(f"s_cbranch_scc1 {name}_drain")
    loop("loopAB", ['steady', 'steady'], "drain")
    A.label(f"{name}_drain")
    ST(20)
    emit(A, poll_ld())
    for m, k in pv(1) + pv(3): A(m)
    srd(A, 16, 6, 7, WS_CTX, SZ_CTX)
    srd(A, 40, 6, 7, WS_Z2, SZ_Z)
    srd(A, 44, 6, 7, WS_Z2N, SZ_Z)
    A(f"""
    v_lshrrev_b32 v1, 5, v0
    v_mul_u32_u24 v1, 1728, v1
    v_and_b32 v3, 31, v0
    v_lshl_add_u32 v6, v3, 4, v1
    v_cmp_gt_u32 vcc, 27, v3
    v_mov_b32 v1, {OOB}
    v_cndmask_b32 v6, v1, v6, vcc
    v_cndmask_b32 v7, 0, 1.0, vcc
    s_lshl_b32 s3, {sX}, 5
    s_add_u32 s3, s3, {sJ}
    s_lshr_b32 {sT}, s3, 4
    s_lshl_b32 s12, 1, {sT}
    s_mul_i32 s3, s3, {8*1728}
    """)
    A(f"v_max_f32 v{V_T}, v{V_L}, v{V_L+8}")
    A(f"v_cmp_u_f32 s[14:15], v{V_L}, v{V_L+8}")
    A(f"v_cmp_u_f32 s[58:59], v{V_L+4}, v{V_L+12}")
    A(f"v_max3_f32 v{V_T}, v{V_T}, v{V_L+4}, v{V_L+12}")
    A(f"v_cmp_lt_f32 vcc, s56, v{V_T}")
    A("s_or_b64 s[14:15], s[14:15], s[58:59]")
    A("s_or_b64 vcc, vcc, s[14:15]")
    A(f"s_cbranch_vccnz {name}_slow")
    A.label(f"{name}_fin")
    def fin(qt):
        l = V_L + 4 * qt
        A(f"v_rcp_f32 v{l}, v{l}")
        A(f"s_add_u32 {sT2}, {sTB if qt < 2 else sTA}, {qt&1}")
        A(f"s_lshl_b32 {sT2}, {sT2}, 17")
        A(f"s_lshl_b32 {sT}, {sHEAD}, 12")
        A(f"s_add_u32 {sT2}, {sT2}, {sT}")
        for ds in range(4):
            r = V_O + (qt * 8 + 2 * ds) * 4
            for i in range(8): A(f"v_mul_f32 v{r+i}, v{r+i}, v{l}")
            for i in range(4): A(f"v_cvt_pk_bf16_f32 v{r+i}, v{r+2*i}, v{r+2*i+1}")
            A(f"buffer_store_dwordx4 {v(r,4)}, v{V_L16}, s[16:19], {sT2} offen offset:{ds*1024}{CTXP}")
    fin(0)
    A("s_waitcnt vmcnt(4)")
    poll_chk("z", 14, "0", "s12")
    ZD = 64
    for j in range(4): A(f"buffer_load_dwordx4 {v(ZD+4*j,4)}, v6, s[40:43], s3 offen offset:{j*432}{SC}")
    for qt in (2, 1, 3): fin(qt)
    ST(21)
    A("s_waitcnt vmcnt(12)")
    layernorm_regs(A, ZD, 16, 80, 864, red32, validmul=7)
    for j in range(4): A(f"buffer_store_dwordx4 {v(ZD+4*j,4)}, v6, s[44:47], s3 offen offset:{j*432}{CTXP}")
    ST(22)
    if ST.on: A("s_waitcnt vmcnt(0)")
    ST(23)
    (STD if 'qz' in EXP else ST).dump(6, 7, sW)
    A(f"{name}_end:")
    A("s_endpgm")
    for tg, chk in spins:
        A.label(f"{name}_spin_{tg}")
        A("s_mov_b32 s101, 0x40000")
        A.label(f"{name}_spinl_{tg}")
        c = "s101"
        emit(A, poll_ld())
        A("s_waitcnt vmcnt(0)")
        emit(A, chk)
        A(f"s_cbranch_scc0 {name}_ret_{tg}")
        A(f"s_sub_u32 {c}, {c}, 1")
        A(f"s_cbranch_scc0 {name}_spinl_{tg}")
        A(f"s_branch {name}_ret_{tg}")
    A.label(f"{name}_slow")
    A("s_nop 7")
    M, D, T = V_T, V_T + 1, V_T + 2
    for qt in range(4):
        u = qt & 1
        A(f"s_lshr_b32 {sT2}, {sTB if qt < 2 else sTA}, 1")
        A(f"s_lshl_b32 {sT2}, {sT2}, 14")
        A(f"s_mov_b32 {sT}, {sT2}")
        for i in range(32): A(f"v_mov_b32 v{V_O+qt*32+i}, 0")
        for i in range(4): A(f"v_mov_b32 v{V_L+4*qt+i}, 0")
        A(f"v_mov_b32 v{M}, s57")
        A.label(f"{name}_sl{qt}")
        for j in range(16):
            if j % 4 == 0: A(f"s_add_u32 s59, {sT}, {j*1024}")
            A(f"buffer_load_dwordx4 {a(A_K+4*j,4)}, v{V_L16}, s[8:11], s59 offen offset:{(j&3)*1024}{SC}")
        A("s_waitcnt vmcnt(0)")
        for t in range(2):
            for ds in range(4):
                A(mfma16(v(S(qt, t), 4), a(A_K + (t * 4 + ds) * 4, 4), a(A_Q + (qt * 4 + ds) * 4, 4), "0" if ds == 0 else None))
        A("s_nop 7")
        A(f"s_cmp_lg_u32 {sT}, {sT2}")
        A(f"s_cbranch_scc1 {name}_sn{qt}")
        A.label(f"{name}_sm{qt}")
        emit(A, mask(qt, T))
        if u == 0:
            for r in range(4): A(f"v_mov_b32 v{S(qt,1,r)}, s57")
        A.label(f"{name}_sn{qt}")
        emit(A, rowmax(qt, 8, D, T))
        A(f"v_max_f32 v{D}, v{D}, v{M}")
        A(f"v_sub_f32 v{T}, v{M}, v{D}")
        A(f"v_exp_f32 v{T}, v{T}")
        A(f"v_mov_b32 v{M}, v{D}")
        for i in range(8): A(f"v_sub_f32 v{S(qt,0)+i}, v{S(qt,0)+i}, v{D}")
        emit(A, exps(qt))
        for i in range(32): A(f"v_mul_f32 v{V_O+qt*32+i}, v{V_O+qt*32+i}, v{T}")
        for i in range(4): A(f"v_mul_f32 v{V_L+4*qt+i}, v{V_L+4*qt+i}, v{T}")
        emit(A, cvts(qt))
        for m, k in pv(qt): A(m)
        A("s_nop 7")
        A(f"s_sub_u32 {sT}, {sT}, 16384")
        A(f"s_cbranch_scc0 {name}_sl{qt}")
        A.label(f"{name}_sx{qt}")
    A.label(f"{name}_last")
    A(f"s_branch {name}_fin")
    A.fix_blocks()
    return f"; @launch kernel={name} grid=(256,1,1) block=(256,1,1) lds=163840", kernel_wrap(name, A.text(), 512, sgpr=102, accum=256), A

if __name__ == '__main__':
    import re
    h, t, A = ka()
    n = "ka_kernel"
    names = [l for l, b in A.blocks]
    def span(a_, b_): return names[names.index(a_):names.index(b_)]
    N = lambda x: f"{n}_{x}"
    nb = lambda t: [x for x in t if not (x and re.search(r'_b[2-9]$', x))]
    B0, B1, C0, C1 = [N(x) for x in ("loopB", "loopB1", "loopAB", "loopAB1")]
    z1 = span(N("z"), N("zs1_0")) + sum([[N(f"zs1_{q}"), N(f"zs3_{q}")] for q in range(4)], []) + [N("qc0")]
    z2 = [x for x in span(N("z"), N("zs1_0")) if '_wb' not in x] + sum([[N(f"zs2_{q}"), N(f"zs3_{q}")] for q in range(4)], []) + [N("qc1")]
    att1 = span(N("q"), B0) + [B0, B1, B0, B1] + span(N("preA"), C0) + [C0, C1, C0, C1] + span(N("drain"), N("end"))
    att2 = nb(span(N("q"), B0)) + [B1, B0, B1, B0] + nb(span(N("preA"), C0)) + [C1, C0, C1, C0] + span(N("drain"), N("end"))
    sl = [N("drain"), N("slow")] + sum([[N(f"sl{q}"), N(f"sm{q}"), N(f"sn{q}"), N(f"sl{q}"), N(f"sn{q}"), N(f"sx{q}")] for q in range(4)], []) + span(N("fin"), N("end"))
    att3 = span(N("q"), B0) + [B0] + span(N("preA"), C0) + sl
    P0 = names[:names.index(N("k"))]
    for nm, tr in (("k-z1", P0 + span(N("k"), N("v")) + z1 + att1), ("v-z2", P0 + span(N("v"), N("z")) + z2 + att2),
                   ("k-noz", P0 + span(N("k"), N("v")) + z1 + att3)):
        for p in A.check(tr, nm)[:30]: print(p)
    print(A.count())
```

```python
from gemm import *
import math

GELU_C0 = -2.0 * 0.7978845608028654 * 1.4426950408889634
GELU_C1 = GELU_C0 * 0.044715
QSCALE = math.log2(math.e) / math.sqrt(128.0)
THRESH = 2.0 ** 32
MOFF = 32.0
EXP = os.environ.get('EXP', '')
R = 8
SC = " sc1"
KVP = os.environ.get('KVP', '')
CTXP = os.environ.get('CTXP', ' sc1')
WST = (2, 3)
SLOT = 32768
OOB = 0x40000000

sW, sWM, sWN, sX, sJ = "s20", "s21", "s22", "s23", "s24"
sL8, sL4 = "s25", "s28"
sXO, sWO = "s26", "s27"
sT, sT2 = "s29", "s34"
sTB, sTA = "s30", "s31"
sXB, sXA = "s32", "s33"
sZX, sP1S = "s35", "s38"
sKV, sM0N, sRD = "s36", "s37", "s39"
sKO = "s56"
sHEAD, sI = "s21", "s22"
sZM, sZN = "s57", "s58"
sCNT = "s58"
S_MASK = 48
sTRIG, sST, sRET, sZB, sAG = "s26", "s27", "s32", "s33", "s35"
N0, NS4 = 10, 14
C_FIN, C_CTX, C_U, C_ZN = 0, 64, 96, 128
V_L16 = 4; V_RD = 5; V_T = 18; V_L = 32; V_NM = 48; V_P = 64; V_S = 80; V_ONE = 112; V_O = 128
A_Q = 0; A_K = 64; A_V = 96
V_SIG = 29
V_POLL = 30
V_DUM = 31

def texts(a_): return atomize([x.text for x in a_.blocks[0][1]])

def kf(name="kf_kernel"):
    A = Asm()
    ST = Stamper(A, os.environ.get("STAMP") == "kf")
    spins = []
    def signal(word_sgpr_expr):
        return ["v_mov_b32 v1, 1", f"buffer_atomic_add v1, v{V_SIG}, s[60:63], {word_sgpr_expr} offen sc1"]
    nrel = [0]
    def release_signal(word):
        nrel[0] += 1
        A("s_cmp_eq_u32 s4, 1")
        A(f"s_cbranch_scc1 {name}_rel{nrel[0]}")
        A.label(f"{name}_wb{nrel[0]}")
        vmsave = A.vm; A.vm = None
        A("buffer_wbl2 sc1")
        A("s_waitcnt vmcnt(0)")
        A.vm = vmsave
        A.label(f"{name}_rel{nrel[0]}")
        emit(A, signal(word))
    poll_ld = lambda: ["v_and_b32 v2, 63, v0", "v_lshlrev_b32 v2, 2, v2", f"buffer_load_dword v{V_POLL}, v2, s[60:63], 0 offen sc1"]
    def poll_chk(tag, need, mask_lo, mask_hi):
        chk = [f"v_cmp_gt_u32 vcc, {need}, v{V_POLL}", f"s_and_b32 vcc_lo, vcc_lo, {mask_lo}", f"s_and_b32 vcc_hi, vcc_hi, {mask_hi}",
               "s_or_b32 vcc_lo, vcc_lo, vcc_hi"]
        emit(A, chk)
        A(f"s_cbranch_scc1 {name}_spin_{tag}")
        A.label(f"{name}_ret_{tag}")
        spins.append((tag, poll_ld(), chk))
    def wsig(off, lane=V_SIG):
        return ["v_mov_b32 v1, 1", f"buffer_atomic_add v1, v{lane}, s[40:43], {off} offen sc1"]
    wpoll = lambda vo, off: [f"buffer_load_dword v{V_POLL}, v{vo}, s[40:43], {off} offen sc1"]
    def wchk(tag, ld, need):
        chk = [f"v_cmp_gt_u32 vcc, {need}, v{V_POLL}", "s_cmp_lg_u64 vcc, 0"]
        emit(A, chk)
        A(f"s_cbranch_scc1 {name}_spin_{tag}")
        A.label(f"{name}_ret_{tag}")
        spins.append((tag, ld, chk))

    A(f"""
    s_cmp_lt_u32 s2, 256
    s_cbranch_scc1 {name}_go
    s_endpgm
    {name}_go:
    s_load_dwordx8 s[48:55], s[0:1], 0
    s_load_dwordx2 s[56:57], s[0:1], {A_WUV}
    s_load_dwordx2 s[58:59], s[0:1], {B_WIN}
    s_load_dwordx4 s[4:7], s[0:1], {D_DBG}
    v_lshrrev_b32 v1, 6, v0
    v_readfirstlane_b32 {sW}, v1
    s_and_b32 {sX}, s2, 7
    s_lshr_b32 {sJ}, s2, 3
    v_and_b32 v{V_L16}, 63, v0
    v_lshlrev_b32 v{V_L16}, 4, v{V_L16}
    v_lshrrev_b32 v1, 5, v0
    v_and_b32 v2, 31, v0
    v_mul_u32_u24 v3, 1280, v1
    v_lshl_add_u32 v32, v2, 3, v3
    v_lshrrev_b32 v3, 1, v2
    v_lshlrev_b32 v33, 7, v3
    v_lshl_add_u32 v33, v1, 4, v33
    v_and_b32 v3, 1, v2
    v_lshl_add_u32 v33, v3, 3, v33
    v_add_u32 v33, {2*SLOT}, v33
    s_lshl_b32 s30, {sX}, 5
    s_add_u32 s30, s30, {sJ}
    s_mul_i32 s31, s30, 10240
    s_lshr_b32 {sWM}, {sW}, 1
    s_and_b32 {sWN}, {sW}, 1
    s_lshl_b32 {sL8}, {sW}, 13
    s_lshl_b32 {sL4}, {sW}, 12
    s_lshl_b32 {sXO}, {sW}, 16
    s_lshl_b32 {sWO}, {sW}, 17
    s_and_b32 s32, {sJ}, 7                ; mtile
    s_lshl_b32 s33, s32, 18
    s_bfe_u32 s35, {sJ}, 0x10003          ; hp
    s_lshl_b32 s36, {sX}, 1
    s_add_u32 s35, s35, s36
    s_lshl_b32 s36, s35, 9
    s_sub_u32 s37, {512*8192}, s36
    """)
    ST()
    setup_xrow_dma(A, 5, 1024)
    setup_w_dma(A, 9, 8192, 256, 'nat')
    A("s_waitcnt lgkmcnt(0)")
    srd(A, 40, 48, 49, 0, SZ_XN)
    vm = VM(); A.vm = vm
    for k in range(5): A(f"buffer_load_dwordx2 {v(34+2*k,2)}, v32, s[40:43], s31 offen offset:{k*256} ; @lnx")
    srd(A, 8, 50, 51, "s33", 256 * 1024)
    A(f"s_cmp_ge_u32 {sJ}, 16")
    A("s_cselect_b32 s12, s56, s54")
    A("s_cselect_b32 s13, s57, s55")
    srd(A, 12, 12, 13, "s36", "s37")
    xslot = lambda st: (2 + (st + 1) % 3) * SLOT
    def wdma(st):
        return tag(dma_group((sL8, (st & 1) * SLOT), (sWO, st * 64 * 8192), 12, [9, 10, 11, 12], sT) +
                dma_group((sL8, (st & 1) * SLOT + 4096), (sWO, st * 64 * 8192), 12, [13, 14, 15, 16], sT), f"w{st}")
    def xdma(st):
        return tag(dma_group((sL8, xslot(st)), (sXO, st * 128), 8, [5, 6, 7, 8], sT) +
                dma_group((sL8, xslot(st) + 4096), (sXO, st * 128 + 32 * 1024), 8, [5, 6, 7, 8], sT), f"x{st}")
    for f in (wdma(0), xdma(0)): emit(A, f)
    if os.environ.get("CW", "1") == "1":
        A(f"""
        s_getpc_b64 s[38:39]
        {name}_pc:
        s_lshl_b32 s34, {sJ}, 12
        s_lshl_b32 s3, {sW}, 10
        s_add_u32 s34, s34, s3
        v_and_b32 v1, 7, v0
        v_lshlrev_b32 v1, 7, v1
        v_add_u32 v1, s34, v1
        v_min_u32 v1, {name}_last-{name}_pc, v1
        global_load_dword a255, v1, s[38:39] ; @cw
        """)
    ST()
    U = Asm(); t1, t2 = "s34", "s38"
    srd(U, 60, 4, 5, 0, 256)
    srd(U, 16, 6, 7, WS_KV, SZ_KV)
    srd(U, 48, 6, 7, 0, SZ_WS)
    U(f"""
    v_cmp_eq_u32 vcc, 0, v0
    v_mov_b32 v1, {OOB}
    v_cndmask_b32 v{V_SIG}, v1, 0, vcc
    s_getreg_b32 {t1}, hwreg(HW_REG_XCC_ID, 0, 4)
    s_lshl_b32 {t1}, 1, {t1}
    v_mov_b32 v1, {t1}
    s_lshl_b32 {t1}, {sX}, 2
    buffer_atomic_or v1, v{V_SIG}, s[60:63], {t1} offen offset:192 sc1
    s_lshl_b32 {sKO}, s35, 1
    s_add_u32 {sKO}, {sKO}, {sWN}
    s_lshl_b32 {sKO}, {sKO}, 3
    s_add_u32 {sKO}, {sKO}, s32
    s_lshl_b32 {sKO}, {sKO}, 1
    s_add_u32 {sKO}, {sKO}, {sWM}
    s_lshl_b32 {sKO}, {sKO}, 16
    s_lshl_b32 s3, s35, 2
    s_add_u32 s3, s3, 64
    s_lshl_b32 {t1}, {sWM}, 14
    s_add_u32 {t1}, {t1}, {2*SLOT}
    """)
    setup_xrow_read(U, 17, t1)
    U(f"v_add_u32 v19, {2*SLOT}, v17")
    U(f"v_add_u32 v20, {2*SLOT}, v18")
    U(f"s_lshl_b32 {t1}, {sWN}, 3")
    setup_w_read(U, 21, 256, 'nat', "0", t1)
    U(f"""
    s_lshr_b32 {t1}, s30, 1
    s_mul_i32 {t1}, {t1}, 20480
    s_and_b32 s39, s30, 1
    s_lshl_b32 s39, s39, 7
    s_add_u32 s39, s39, {t1}
    s_lshl_b32 {t1}, {sW}, 11
    s_add_u32 s39, s39, {t1}              ; xnF offset of this wave's first piece
    s_lshr_b32 s55, s30, 4
    s_lshl_b32 s55, s55, 2
    v_bfe_u32 v1, v0, 5, 1
    v_bfe_u32 v2, v0, 3, 2
    v_and_b32 v3, 7, v0
    v_lshlrev_b32 v3, 4, v3
    v_lshl_add_u32 v3, v2, 8, v3
    v_lshl_add_u32 v{V_DUM}, v1, 10, v3
    v_lshlrev_b32 v{V_POLL}, 4, v0
    v_add_u32 v{V_POLL}, {2*SLOT}, v{V_POLL}
    s_lshl_b32 {sHEAD}, {sX}, 2
    s_and_b32 {t1}, {sJ}, 3
    s_add_u32 {sHEAD}, {sHEAD}, {t1}
    s_lshr_b32 {sI}, {sJ}, 2
    s_lshl_b32 {t1}, {sHEAD}, 8
    s_sub_u32 {t2}, {640*8192}, {t1}
    """)
    srd(U, 44, 52, 53, t1, t2)
    U(f"""
    s_lshr_b32 s37, {sHEAD}, 1
    s_min_u32 {t1}, s37, 13
    s_lshl_b32 {t1}, {t1}, 8
    s_sub_u32 {t2}, {640*3456}, {t1}
    s_cmp_ge_u32 s37, 14
    s_cselect_b32 {t2}, 0, {t2}
    """)
    srd(U, 40, 58, 59, t1, t2)
    U(f"""
    s_mov_b32 {sZN}, s37
    s_sub_u32 {t1}, 15, {sI}
    s_lshl_b32 {sTB}, {t1}, 3
    s_lshl_b32 {t2}, {sW}, 1
    s_add_u32 {sTB}, {sTB}, {t2}
    s_lshl_b32 {sTA}, {sI}, 3
    s_add_u32 {sTA}, {sTA}, {t2}
    s_bitcmp1_b32 {sHEAD}, 0
    s_cselect_b32 {sZM}, {sTA}, {sTB}     ; first t tile of the z rows of this wave (odd heads: block A)
    s_cselect_b32 {sXA}, {sTB}, {sTA}
    s_mul_i32 {sXB}, {sZM}, 20480         ; x tiles 0,1
    s_mul_i32 {sXA}, {sXA}, 20480         ; x tiles 2,3
    s_lshl_b32 {sKV}, {t1}, 2
    s_add_u32 {sKV}, {sKV}, 3
    s_lshr_b32 {t1}, {sW}, 1
    s_add_u32 {sKV}, {sKV}, {t1}
    s_lshl_b32 {sKV}, {sKV}, 14
    s_add_u32 {sKV}, {sKV}, {sL4}
    s_mul_i32 s54, {sW}, {16*3456}
    """)
    interleave(A, texts(U), wdma(1))
    A(f"s_waitcnt vmcnt({vm.count('lnx')})")
    ST()
    def red32(A, r, t):
        for m in ("quad_perm:[1,0,3,2]", "quad_perm:[2,3,0,1]", "row_half_mirror", "row_mirror"):
            A(f"v_add_f32_dpp v{r}, v{r}, v{r} {m} row_mask:0xf bank_mask:0xf")
        swap_reduce(A, "v_add_f32", r, t, 16)
    U = Asm()
    ln_lean(U, list(range(34, 44)), 48, 640, red32)
    interleave(A, texts(U), xdma(1), 0, 120)
    for k in range(5): A(f"ds_write_b64 v33, {v(34+2*k,2)} offset:{k*2048}")
    lnrd = [f"ds_read_b128 {a(224+4*n,4)}, v{V_POLL} offset:{n*4096}" for n in range(3)]
    lnst = [f"buffer_store_dwordx4 {a(224,4)}, v{V_DUM}, s[48:51], s39 offen{SC}",
            ["s_add_u32 s39, s39, 8192", f"buffer_store_dwordx4 {a(228,4)}, v{V_DUM}, s[48:51], s39 offen{SC}"],
            ["s_add_u32 s39, s39, 8192", f"s_cmp_ge_u32 {sW}, 2", f"s_cselect_b32 s39, {OOB}, s39",
             f"buffer_store_dwordx4 {a(232,4)}, v{V_DUM}, s[48:51], s39 offen{SC}"],
            ["v_mov_b32 v1, 0", "s_lshl_b32 s39, s2, 8", f"s_add_u32 s39, s39, {WS_CNT}", f"buffer_store_dword v1, v{V_SIG}, s[48:51], s39 offen{SC}"]]

    accreg_i = lambda i: ('v', 32 + 4 * i) if i < 56 else ('a', 4 * (i - 56))
    accreg = lambda i: (v if i < 56 else a)(accreg_i(i)[1], 4)
    wreg = lambda par, nt, ks: 32 + par * 64 + (ks * 8 + nt) * 4
    xreg = lambda mt, ks: 160 + (mt * 2 + ks) * 4
    def xreads(st, half):
        sl = xslot(st) - 2 * SLOT
        base = 17 if sl < 2 * SLOT else 19
        return [f"ds_read_b128 {a(xreg(mt, ks), 4)}, v{base+ks} offset:{(sl % (2*SLOT)) + mt*2048}"
                for mt in range(4 * half, 4 * half + 4) for ks in range(2)]
    def wreads(st):
        return w_reads(lambda t, ks: ('a', wreg(st & 1, t, ks)), 21, 256, 'nat', (st & 1) * SLOT)
    def pfill(s_):
        o = (s_ % 5) * SLOT
        return tag(dma_group((sL4, o + 16384), ("s54", s_ * 64 * 3456), 40, [5, 6, 7, 8], sT) +
                   dma_group((sL4, o), (sWO, s_ * 64 * 8192), 44, [9, 10, 11, 12], sT), f"p{s_}")
    def preads(s_, z):
        sl = s_ % 5
        r = w_reads(lambda t, ks: ('a', wreg(z, t, ks)), 21, 128, 'nat', (sl & 1) * SLOT + z * 16384, NT=8)
        if not z and sl in (2, 4): r = [[f"v_add_u32 v{21+t}, 65536, v{21+t}" for t in range(8)]] + r
        if not z and s_ == 5: r = [[f"v_subrev_u32 v{21+t}, 131072, v{21+t}" for t in range(8)]] + r
        return r
    QXR = [224, 160, 192]
    def qxload(s_):
        out = []
        for qt in range(4):
            r = QXR[s_ % 3] + qt * 8
            out.append([f"s_add_u32 {sT2}, {sXB if qt < 2 else sXA}, {(qt&1)*20480 + s_*2048}",
                        f"buffer_load_dwordx4 {a(r,4)}, v{V_L16}, s[48:51], {sT2} offen{SC}"])
            out.append(f"buffer_load_dwordx4 {a(r+4,4)}, v{V_L16}, s[48:51], {sT2} offen offset:1024{SC}")
        return tag(out, f"qx{s_}")
    def kvstore(p, tmp=224):
        out = []
        if 2 * p < 56: r = 32 + 8 * p
        else:
            r = tmp + 8 * (p - 28)
            out += [f"v_accvgpr_read_b32 v{r+i}, a{8*(p-28)+i}" for i in range(8)]
        out += [f"v_cvt_pk_bf16_f32 v{r+i}, v{r+2*i}, v{r+2*i+1}" for i in range(4)]
        off = (p >> 3) * 16384 + (p & 7) * 1024
        st_ = f"buffer_store_dwordx4 {v(r,4)}, v{V_L16}, s[16:19], s53 offen offset:{(p&3)*1024}{KVP}"
        out.append([f"s_add_u32 s53, {sKO}, {off}", st_] if (p & 3) == 0 else st_)
        return out
    ST()
    A(f"s_waitcnt vmcnt({vm.count('w0', 'x0')}) lgkmcnt(0)")
    A("s_barrier")
    ST()
    emit(A, wreads(0)); emit(A, xreads(0, 0)); emit(A, lnrd)
    A(f"s_cmp_ge_u32 {sJ}, 16")
    A(f"s_cbranch_scc1 {name}_v")
    vm0 = list(vm.ops)
    for variant in ("k", "v"):
        A.label(f"{name}_{variant}")
        vm.ops = list(vm0)
        if variant == "v": A(f"s_add_u32 {sKO}, {sKO}, 8192")
        idx = (lambda mt, nt: mt * 8 + nt) if variant == "k" else (lambda mt, nt: (mt >> 1) * 16 + nt * 2 + (mt & 1))
        def mf(st, half):
            out = []
            for mt in range(4 * half, 4 * half + 4):
                for nt in range(8):
                    for ks in range(2):
                        w = a(wreg(st & 1, nt, ks), 4); x = a(xreg(mt, ks), 4)
                        d = accreg(idx(mt, nt)); c = "0" if (st == 0 and ks == 0) else None
                        out.append(mfma16(d, w, x, c) if variant == "k" else mfma16(d, x, w, c))
            return out
        for st in range(8):
            if st == 7:
                A(f"s_waitcnt vmcnt({vm.count('pollx')}) lgkmcnt(0)")
                A("s_barrier")
                poll_chk(f"xn{variant}", 16, "0xffff", "0")
                A(f"s_add_u32 {sT}, {sX}, 48")
                A(f"v_readlane_b32 s4, v{V_POLL}, {sT}")
                A("s_bcnt1_i32_b32 s4, s4")
            else:
                A("s_waitcnt lgkmcnt(0)")
                if st != 1: A("s_barrier")
            ld = []; misc = []
            if st == 0: ld = lnst + xdma(2)
            if st <= 5 and st != 1: ld += wdma(st + 2)
            if st == 5:
                l = Asm(); setup_w_dma(l, 5, 3456, 128, 'nat'); misc = texts(l)
            if st == 6: ld = pfill(0)
            if st == 7:
                ld = merge(pfill(1), qxload(0))
                l = Asm(); setup_w_read(l, 21, 128, 'nat', "0", "0", NT=8); misc = texts(l)
            fill = merge(*[x for x in (ld, xreads(st, 1) + [[]] * 8, misc) if x])
            interleave(A, mf(st, 0), fill, 0, 62)
            ST({0: 5, 1: 7, 7: 9}[st]) if st in (0, 1, 7) and not ('qz' in EXP) else None
            if st == 1: A("s_waitcnt vmcnt(0) lgkmcnt(0)")
            elif st < 7: A(f"s_waitcnt vmcnt({vm.count(f'w{st+1}', f'x{st+1}')}) lgkmcnt(0)")
            else: A(f"s_waitcnt vmcnt({vm.count('p0')}) lgkmcnt(0)")
            A("s_barrier")
            ST({0: 6, 1: 8, 7: 10}[st]) if st in (0, 1, 7) and not ('qz' in EXP) else None
            ld = []
            if st == 1:
                ld += [signal("s55")]
                ld += wdma(3)
            if st in WST:
                pitch, n, d = ((8192, 20, 44), (3456, 10, 40))[WST.index(st)]
                w_ = ["v_bfe_u32 v1, v0, 1, 5", f"v_cmp_gt_u32 vcc, {n}, v1", f"v_mul_u32_u24 v1, {pitch}, v1", "v_and_b32 v2, 1, v0",
                      "v_lshl_add_u32 v1, v2, 7, v1", f"v_mov_b32 v2, {OOB}", "v_cndmask_b32 v1, v2, v1, vcc"]
                if d == 44: w_ += [f"s_lshl_b32 {sT2}, {sI}, 2"]
                else: w_ += [f"s_and_b32 {sT2}, {sHEAD}, 1", f"s_lshl_b32 s39, {sI}, 1", f"s_add_u32 {sT2}, {sT2}, s39", f"s_lshl_b32 {sT2}, {sT2}, 2"]
                w_ += [f"s_add_u32 {sT2}, {sT2}, {sW}", f"s_mul_i32 {sT2}, {sT2}, {n*pitch}",
                       f"buffer_load_dword v{V_DUM}, v1, s[{d}:{d+3}], {sT2} offen"]
                ld += [w_[:7], w_[7:]]
            if st == 6:
                ld += tag([poll_ld()], 'pollx')
            if st == 5:
                D = 8192 - 3456
                ld += [["v_bfe_u32 v1, v0, 4, 2", f"v_mul_u32_u24 v1, {D}, v1"] +
                       sum([[f"v_add_u32 v{9+k}, v{5+k}, v1"] + ([f"v_add_u32 v{9+k}, {4*k*D}, v{9+k}"] if k else []) for k in range(4)], [])]
            if st <= 4: ld += xdma(st + 3)
            elif st < 7: ld += pfill(st - 3)
            if st < 7:
                fill = merge(ld, xreads(st + 1, 0) + wreads(st + 1))
            else:
                stores = []
                for p in range(16): stores += kvstore(p)
                fill = merge(stores, pfill(4), qxload(1), preads(0, 0))
            interleave(A, mf(st, 1), fill, 0, 60)
        if variant == "k": A(f"s_branch {name}_z")
    A.label(f"{name}_z")
    ST(11)
    zacc = lambda tt, e: 160 + (tt * 8 + e) * 4
    qacc = lambda qt, e: 32 + (qt * 8 + e) * 4
    NS = 10
    A(f"s_lshl_b32 {sT}, {sHEAD}, 20")
    A(f"s_add_u32 {sT}, {sT}, {WS_KV}")
    A(f"s_sub_u32 {sT2}, {WS_Z2N + 4*MB}, {sT}")
    A(f"s_cmp_eq_u32 {sI}, 0")
    A(f"s_cselect_b32 {sT2}, {MB}, {sT2}")
    srd(A, 8, 6, 7, sT, sT2)
    A(f"s_lshr_b32 {sT}, {sHEAD}, 1")
    A(f"s_add_u32 {sT}, {sT}, 16")
    A(f"s_lshl_b32 s52, 1, {sT}")
    def kvld():
        return [f"buffer_load_dwordx4 v{V_L16}, s[8:11], {sKV} offen offset:{k*1024}{SC} lds" for k in range(4)]
    def kvdma(slot):
        ld = kvld()
        return [[f"s_add_u32 m0, {sL4}, {slot*16384}", ld[0]], ld[1], ld[2], [ld[3], f"s_sub_u32 {sKV}, {sKV}, 16384"]]
    carry = []
    for st in range(NS):
        if 'qz' in EXP: ST(3 * st + 1)
        A(f"s_waitcnt vmcnt({vm.count(f'qx{st}')}) lgkmcnt(0)")
        if 'qz' in EXP: ST(3 * st + 2)
        xl = qxload(st + 2) if st + 2 < NS else []
        stores = []
        if st < 2:
            for p in range(16 + 8 * st, 24 + 8 * st): stores += kvstore(p)
        ldq = merge(carry, xl[:6]) if (carry and xl) else (carry or xl[:6])
        if st == 6: ldq = ldq[:3] + tag([poll_ld()], 'pollk') + ldq[3:]
        if st == 2: ldq = ldq + [[]] * 8
        mfl = [mfma16(v(qacc(qt, e), 4), a(wreg(0, e, ks), 4), a(QXR[st % 3] + qt * 8 + ks * 4, 4), "0" if (st == 0 and ks == 0) else None)
               for qt in range(4) for e in range(8) for ks in range(2)]
        interleave(A, mfl, merge(*[x for x in (ldq, stores, preads(st, 1)) if x]), 0, 60)
        if 'qz' in EXP: ST(3 * st + 3)
        if st == 2: A("s_waitcnt vmcnt(0) lgkmcnt(0)")
        elif st == 6: A(f"s_waitcnt vmcnt({vm.count('p7', 'pollk')}) lgkmcnt(0)")
        elif st + 1 < NS: A(f"s_waitcnt vmcnt({vm.count(f'p{st+1}')}) lgkmcnt(0)")
        else: A("s_waitcnt lgkmcnt(0)")
        if st + 1 < NS: A("s_barrier")
        if st == 2: release_signal("s3")
        if st == 6: poll_chk("kv", 16, "s52", "0")
        per = pfill(st + 5) if st < 5 else (kvdma(2 * (st - 6)) + kvdma(2 * (st - 6) + 1) if 6 <= st <= 8 else [])
        carry = per[4:]
        ldz = merge(per[:4], xl[6:]) if (per and xl) else (per[:4] or xl[6:])
        mfl = [mfma16(v(zacc(tt, e), 4), a(wreg(1, e, ks), 4), a(QXR[st % 3] + tt * 8 + ks * 4, 4), "0" if (st == 0 and ks == 0) else None)
               for tt in range(2) for e in range(8) for ks in range(2)]
        rd = preads(st + 1, 0) if st + 1 < NS else []
        interleave(A, mfl, merge(*[x for x in (ldz, rd) if x]) if (ldz or rd) else [], 0, 29)
    if 'qz' in EXP: ST(31); ST.on = False; STD = Stamper(A, True)
    ST(12)
    A(f"s_load_dwordx2 s[16:17], s[0:1], {A_WO}")
    A(f"s_load_dwordx4 s[44:47], s[0:1], {B_WSP}")
    A(f"s_load_dwordx2 s[48:49], s[0:1], {B_WOUT}")
    G = Asm()
    G(f"s_mov_b32 s52, {fbits(GELU_C1)}")
    G(f"v_mov_b32 v3, {fbits(GELU_C0)}")
    for b in range(0, 64, 8):
        rs = [160 + b + i for i in range(8)]
        ts = [224 + i for i in range(8)]
        for r, t in zip(rs, ts): G(f"v_mul_f32 v{t}, v{r}, v{r}")
        for r, t in zip(rs, ts): G(f"v_fma_f32 v{t}, v{t}, s52, v3")
        for r, t in zip(rs, ts): G(f"v_mul_f32 v{t}, v{t}, v{r}")
        for r, t in zip(rs, ts): G(f"v_exp_f32 v{t}, v{t}")
        for r, t in zip(rs, ts): G(f"v_add_f32 v{t}, 1.0, v{t}")
        for r, t in zip(rs, ts): G(f"v_rcp_f32 v{t}, v{t}")
        for r, t in zip(rs, ts): G(f"v_mul_f32 v{r}, v{r}, v{t}")
        for i in range(4): G(f"v_cvt_pk_bf16_f32 v{160+b+i}, v{160+b+2*i}, v{160+b+2*i+1}")
    emit(A, texts(G))
    ST(13)
    srd(A, 40, 6, 7, 0, SZ_WS)
    A(f"""
    v_and_b32 v1, 15, v0
    v_mul_u32_u24 v1, 1728, v1
    v_bfe_u32 v2, v0, 4, 1
    v_lshl_add_u32 v1, v2, 5, v1
    v_bfe_u32 v2, v0, 5, 1
    v_lshl_add_u32 v2, v2, 4, v1
    s_mov_b32 s52, {sZM}                  ; first t tile
    s_lshl_b32 s53, {sZN}, 2              ; first f step
    """)
    A.vm = None
    for q in range(4):
        A(f"s_add_u32 {sT}, s53, {q}")
        A(f"s_cmp_ge_u32 {sT}, 27")
        A(f"s_cbranch_scc1 {name}_zs2_{q}")
        A.label(f"{name}_zs1_{q}")
        A(f"s_mul_i32 {sT2}, s52, 27")
        A(f"s_add_u32 {sT2}, {sT2}, {sT}")
        A(f"s_lshl_b32 {sT2}, {sT2}, 10")
        for tt in range(2):
            A(f"s_add_u32 {sT2}, {sT2}, {27*1024 if tt else WS_Z1}")
            A(f"buffer_store_dwordx4 {v(zacc(tt, 2*q), 4)}, v{V_L16}, s[40:43], {sT2} offen{SC}")
        A(f"s_branch {name}_zs3_{q}")
        A.label(f"{name}_zs2_{q}")
        A(f"s_mul_i32 {sT2}, s52, {16*1728}")
        A(f"s_cmp_ge_u32 {sT}, 54")
        A(f"s_cselect_b32 {sT2}, {OOB}, {sT2}")
        A(f"s_sub_u32 {sT}, {sT}, 27")
        A(f"s_lshl_b32 {sT}, {sT}, 6")
        A(f"s_add_u32 {sT2}, {sT2}, {sT}")
        for tt in range(2):
            r = zacc(tt, 2 * q)
            A(f"v_permlane16_swap_b32 v{r}, v{r+2}")
            A(f"v_permlane16_swap_b32 v{r+1}, v{r+3}")
            A(f"s_add_u32 {sT2}, {sT2}, {16*1728 if tt else WS_Z2}")
            A(f"buffer_store_dwordx4 {v(r, 4)}, v2, s[40:43], {sT2} offen{SC}")
        A.label(f"{name}_zs3_{q}")
    vm.add('zs', 8); A.vm = vm
    A(f"s_lshr_b32 s3, {sZM}, 3")
    A("s_lshl_b32 s3, s3, 2")
    A("s_add_u32 s3, s3, 128")
    A(f"s_cmp_ge_u32 {sZN}, 14")
    A(f"s_cselect_b32 s3, {OOB}, s3")
    ST(14)
    A(f"s_mov_b32 {sT}, {fbits(QSCALE)}")
    for r in range(32, 160, 8):
        for i in range(8): A(f"v_mul_f32 v{r+i}, {sT}, v{r+i}")
        for i in range(4): A(f"v_cvt_pk_bf16_f32 v{r+i}, v{r+2*i}, v{r+2*i+1}")
    A(f"s_bitcmp1_b32 {sHEAD}, 0")
    A(f"s_cbranch_scc1 {name}_qc1")
    for odd in range(2):
        A.label(f"{name}_qc{odd}")
        for qt in range(4):
            for ds in range(4):
                for i in range(4): A(f"v_accvgpr_write_b32 a{A_Q + ((qt ^ (2*odd))*4+ds)*4 + i}, v{qacc(qt, 2*ds)+i}")
        if not odd: A(f"s_branch {name}_q")
    A.label(f"{name}_q")
    ST(15)
    A("s_waitcnt lgkmcnt(0)")
    A("s_mov_b32 s12, s48")
    A("s_mov_b32 s13, s49")
    for i in range(128): A(f"v_mov_b32 v{V_O+i}, 0")
    for i in range(16): A(f"v_mov_b32 v{V_L+i}, 0")
    for i in range(4): A(f"v_mov_b32 v{V_ONE+i}, 0x3f803f80")
    A("v_and_b32 v1, 15, v0")
    A("v_bfe_u32 v2, v0, 4, 2")
    A("v_lshlrev_b32 v2, 2, v2")
    for r in range(4):
        A(f"v_add_u32 v3, {r}, v2")
        A(f"v_cmp_le_u32 s[{S_MASK+2*r}:{S_MASK+2*r+1}], v3, v1")
    A(f"""
    s_mov_b64 s[4:5], s[46:47]
    s_mov_b32 s46, {2048*4096}
    s_mov_b32 s47, 0x20000
    s_lshl_b32 s14, s2, 2
    s_add_u32 s14, s14, {sW}
    s_sub_u32 s14, s14, 512
    s_lshl_b32 s15, s14, 14
    s_cmp_ge_u32 s14, 320
    s_cselect_b32 s16, s12, s16
    s_cselect_b32 s17, s13, s17
    s_mov_b32 s18, {4096*1280}
    s_cselect_b32 s18, {864*1280}, s18
    s_mov_b32 s19, 0x20000
    s_cselect_b32 s14, {320*16384}, 0
    s_sub_u32 s14, s15, s14
    s_cmp_lt_u32 s2, 128
    s_cselect_b32 s14, {OOB}, s14
    s_cselect_b32 s15, {OOB}, s15
    v_lshlrev_b32 v6, 3, v{V_L16}
    v_add_u32 v7, 8192, v6
    s_sub_u32 {sTRIG}, {sKV}, {N0*16384-1}
    s_mov_b32 {sST}, 0
    s_mov_b32 {sRET}, 0
    s_max_u32 {sT}, {sI}, 1
    s_sub_u32 {sT}, {sT}, 1               ; gnt
    s_lshl_b32 {sZB}, {sT}, 1
    s_and_b32 {sT}, {sX}, 1               ; gs
    s_add_u32 {sZB}, {sZB}, {sT}
    s_lshl_b32 {sZB}, {sZB}, 18
    s_lshl_b32 {sAG}, {sT}, 11
    s_lshl_b32 {sT}, {sHEAD}, 20
    s_sub_u32 {sZB}, {sZB}, {sT}
    s_add_u32 {sZB}, {sZB}, {WS_Z2N - WS_KV + 16*16384}
    s_lshr_b32 {sT}, {sW}, 1
    s_lshl_b32 {sT}, {sT}, 14
    s_sub_u32 {sZB}, {sZB}, {sT}
    s_add_u32 {sZB}, {sZB}, {sL4}
    s_lshr_b32 {sT}, {sX}, 1
    s_lshl_b32 {sT}, {sT}, 2
    s_and_b32 {sT2}, {sJ}, 3
    s_add_u32 s38, {sT}, {sT2}            ; gmt
    s_lshl_b32 {sT}, s38, 2
    s_add_u32 {sT}, {sT}, {sW}
    s_lshl_b32 {sT}, {sT}, 17
    s_add_u32 {sAG}, {sAG}, {sT}
    s_add_u32 {sAG}, {sAG}, {15*128}
    s_mov_b32 s56, {fbits(THRESH)}
    s_mov_b32 s57, 0xff800000
    s_waitcnt vmcnt(0)
    s_barrier
    """)
    emit(A, signal("s3"))
    ST(16)
    warm = [f"buffer_load_dword v{V_DUM}, v{r}, s[{d}:{d+3}], {o} offen" for d, o in ((44, "s15"), (16, "s14")) for r in (6, 7)]

    S = lambda qt, t, r=0: V_S + qt * 8 + t * 4 + r
    def qk(qt, mode):
        out = []
        for t in range(2):
            if mode == 'first' and (qt & 1) == 0 and t == 1: continue
            for ds in range(4):
                c = None
                if ds == 0: c = "0" if mode == 'first' else v(V_NM + 4 * qt, 4)
                out.append((mfma16(v(S(qt, t), 4), a(A_K + (t * 4 + ds) * 4, 4), a(A_Q + (qt * 4 + ds) * 4, 4), c), ('k', t * 4 + ds)))
        return out
    def pv(qt):
        out = [(mfma16(v(V_O + (qt * 8 + e) * 4, 4), a(A_V + e * 4, 4), v(V_P + 4 * qt, 4)), ('v', e)) for e in range(8)]
        return [(mfma16(v(V_L + 4 * qt, 4), v(V_ONE, 4), v(V_P + 4 * qt, 4)), ('one', 0))] + out
    exps = lambda qt, n=8: [f"v_exp_f32 v{S(qt,0)+i}, v{S(qt,0)+i}" for i in range(n)]
    cvts = lambda qt, n=8: [f"v_cvt_pk_bf16_f32 v{V_P+4*qt+j}, v{S(qt,0)+2*j}, v{S(qt,0)+2*j+1}" for j in range(n // 2)]
    def rowmax(qt, n, d, t):
        s0 = S(qt, 0)
        out = [f"v_max3_f32 v{d}, v{s0}, v{s0+1}, v{s0+2}"]
        if n == 4: out.append(f"v_max_f32 v{d}, v{d}, v{s0+3}")
        else:
            out += [f"v_max3_f32 v{d}, v{d}, v{s0+3}, v{s0+4}", f"v_max3_f32 v{d}, v{d}, v{s0+5}, v{s0+6}", f"v_max_f32 v{d}, v{d}, v{s0+7}"]
        for wh in (16, 32):
            out += [f"v_mov_b32 v{t}, v{d}", f"v_permlane{wh}_swap_b32 v{t}, v{d}", f"v_max_f32 v{d}, v{d}, v{t}"]
        return out
    def mask(qt, T):
        u = qt & 1
        return [f"v_mov_b32 v{T}, s57"] + [f"v_cndmask_b32 v{S(qt,u,r)}, v{T}, v{S(qt,u,r)}, s[{S_MASK+2*r}:{S_MASK+2*r+1}]" for r in range(4)]
    def sm_diag(qt):
        u = qt & 1
        n = 4 if u == 0 else 8
        T = V_T
        out = mask(qt, T) + rowmax(qt, n, T, T + 1)
        out.append(f"v_add_f32 v{T}, {fbits(MOFF)}, v{T}")
        for i in range(n): out.append(f"v_sub_f32 v{S(qt,0)+i}, v{S(qt,0)+i}, v{T}")
        for r in range(4): out.append(f"v_sub_f32 v{V_NM+4*qt+r}, 0, v{T}")
        out += exps(qt, n) + cvts(qt, n)
        if u == 0: out += [f"v_mov_b32 v{V_P+4*qt+2}, 0", f"v_mov_b32 v{V_P+4*qt+3}, 0"]
        return out
    def phase(mf, steady, diag, after, pin):
        n = len(mf)
        lastpos = {}
        for i, (m, k) in enumerate(mf): lastpos[k] = i
        pinned = {}; loose = []
        for k, ins in after.items():
            if k in lastpos: pinned.setdefault(lastpos[k], []).extend(ins)
            else: loose.extend(ins)
        if n == 0:
            emit(A, loose); emit(A, [x for f, x in pin]); return
        for f, x in pin: pinned.setdefault(int(f * n), []).append(x)
        es = []; cs = []
        for qt in steady:
            base = len(es)
            es += [(x, []) for x in exps(qt)]
            cs += [(x, [(0, base + 2 * j), (0, base + 2 * j + 1)]) for j, x in enumerate(cvts(qt))]
        streams = [es, cs, [(x, []) for qt in diag for x in sm_diag(qt)], [(x, []) for x in loose]]
        sched(A, [m for m, k in mf], pinned, streams)
    ncond = [0]
    def top(sync):
        if sync == 'never': return
        if sync == 'cond':
            ncond[0] += 1
            A(f"s_bitcmp1_b32 {sRD}, 14")
            A(f"s_cbranch_scc1 {name}_nb{ncond[0]}")
            A.label(f"{name}_b{ncond[0]}")
        A(f"s_waitcnt vmcnt({4*(R-4)}) lgkmcnt(0)")
        A("s_barrier")
        if sync == 'cond': A.label(f"{name}_nb{ncond[0]}")
        else:
            A(f"s_cmp_lt_u32 {sKV}, {sTRIG}")
            A(f"s_cbranch_scc1 {name}_hnd")
            A.label(f"{name}_{sync}_r")
    ptr = [f"s_mov_b32 m0, {sM0N}", f"s_add_u32 {sM0N}, {sRD}, {sL4}", f"s_add_u32 {sRD}, {sRD}, 16384", f"s_and_b32 {sRD}, {sRD}, {R*16384-1}"]
    def iteration(modes, tail=[], sync='cond'):
        top(sync)
        kr = {('k', j): [f"ds_read_b128 {a(A_K+4*j,4)}, v{V_RD} offset:{j*1024}"] for j in range(8)}
        vr = {('v', e): [f"ds_read_b128 {a(A_V+4*e,4)}, v{V_RD} offset:{8192+e*1024}"] for e in range(8)}
        mq, mp, st, dg = [], [], [], []
        for st_, md in enumerate(modes):
            q0, q1 = 2 * st_, 2 * st_ + 1
            if md == 'steady': mq += qk(q1, 'n'); mp += pv(q1); st.append(q0)
            elif md == 'diag': mq += qk(q1, 'first'); dg.append(q0)
        other = dict(kr)
        if modes[0] != 'pre': other.update(vr)
        phase(mq + mp, st, dg, other, [])
        mq, mp, st, dg = [], [], [], []
        for st_, md in enumerate(modes):
            q0, q1 = 2 * st_, 2 * st_ + 1
            if md == 'steady': mq += qk(q0, 'n'); mp += pv(q0); st.append(q1)
            elif md == 'diag': mq += qk(q0, 'n'); mp += pv(q0); dg.append(q1)
            elif md == 'pre': mq += qk(q0, 'first')
        A("s_waitcnt lgkmcnt(%d)" % (8 if modes[0] == 'steady' else 0))
        mfl = mq + mp
        if mp: mfl[len(mq) + 1] = ("s_waitcnt lgkmcnt(0)\n" + mfl[len(mq) + 1][0], mfl[len(mq) + 1][1])
        ld = kvld()
        pin = [(0.05, ld[0]), (0.28, ld[1]), (0.51, ld[2]), (0.74, ld[3]), (0.80, [f"s_sub_u32 {sKV}, {sKV}, 16384", f"s_cselect_b32 {sKV}, {sZB}, {sKV}"]),
               (0.86, ptr[0:2]), (0.92, ptr[2:4]), (0.99, [f"v_add_u32 v{V_RD}, {sRD}, v{V_L16}"] + tail)]
        phase(mfl, st, dg, {}, pin)
    def loop(tag, modes, nxt):
        A(f"s_bitcmp1_b32 {sRD}, 14")
        A(f"s_cbranch_scc1 {name}_{tag}1")
        A.label(f"{name}_{tag}")
        iteration(modes, [f"s_sub_u32 {sCNT}, {sCNT}, 1"], tag)
        A(f"s_cbranch_scc1 {name}_{nxt}")
        A.label(f"{name}_{tag}1")
        iteration(modes, [f"s_sub_u32 {sCNT}, {sCNT}, 1"], 'never')
        A(f"s_cbranch_scc0 {name}_{tag}")
    A(f"s_mov_b32 {sRD}, 0")
    A(f"s_add_u32 m0, {sL4}, {6*16384}")
    A(f"s_add_u32 {sM0N}, {sL4}, {7*16384}")
    A(f"v_mov_b32 v{V_RD}, v{V_L16}")
    A(f"s_sub_u32 {sCNT}, 3, {sW}")
    A.label(f"{name}_idle")
    A(f"s_cmp_eq_u32 {sCNT}, 0")
    A(f"s_cbranch_scc1 {name}_preB")
    A.label(f"{name}_idle_b")
    top('cond')
    emit(A, kvld() + [f"s_sub_u32 {sKV}, {sKV}, 16384"] + ptr + [f"v_add_u32 v{V_RD}, {sRD}, v{V_L16}"])
    A(f"s_sub_u32 {sCNT}, {sCNT}, 1")
    A(f"s_branch {name}_idle")
    A.label(f"{name}_preB")
    iteration(['pre', 'off'])
    iteration(['diag', 'off'])
    A(f"s_lshl_b32 {sCNT}, {sI}, 3")
    A(f"s_sub_u32 {sCNT}, 57, {sCNT}")
    ST(17)
    loop("loopB", ['steady', 'off'], "preA")
    A.label(f"{name}_preA")
    ST(18)
    iteration(['steady', 'pre'])
    iteration(['steady', 'diag'], warm)
    ST(19)
    A(f"s_mov_b32 {sRET}, 1")
    A(f"s_lshl_b32 {sCNT}, {sI}, 2")
    A(f"s_add_u32 {sCNT}, {sCNT}, {sW}")
    A(f"s_sub_u32 {sCNT}, {sCNT}, 1")
    A(f"s_cbranch_scc1 {name}_drain")
    loop("loopAB", ['steady', 'steady'], "drain")
    A.label(f"{name}_drain")
    ST(20)
    vm = VM(); A.vm = vm; vm.add('pre')
    sR4 = {'lo': "s12", 'hi': "s13", 'c': "s14"}
    sR5 = {'lo': "s15", 'hi': "s26", 'c': "s27"}
    unit = lambda u: ('lo', u) if u < 4 else ('hi', u - 4) if u < 8 else ('c', u - 8)
    RG = {'lo': 0, 'hi': 1, 'c': 2}
    def adma(sg, u):
        r, k = unit(u)
        return tag(dma_group((sR4[r], k * 16384), (sAG, hex(-sg * 128 & 0xffffffff)), 44, [21, 22, 23, 24], sT), f"ga{sg}")
    def bdma(sg, u):
        r, k = unit(u); ld = kvld()
        return tag([[f"s_add_u32 m0, {sR4[r]}, {k*16384}", ld[0]], ld[1], ld[2], [ld[3], f"s_sub_u32 {sKV}, {sKV}, 16384"]], f"gb{sg}")
    UA = [8, 9, 0, 7, 1, 2, 8, 0, 4, 3, 7, 8, 0, 4, 2, 6]
    UB = [1, 2, 3, 4, 5, 6, 9, 1, 5, 2, 6, 9, 1, 5, 3, 7]
    GL = {0: "a4", 1: "a5 a6 b6", 2: "a7 a9", 3: "a8 a10", 4: "b7 b8", 5: "b9 b10", 6: "a11 b11", 7: "a12 b12", 8: "a13 b13", 9: "a14 b14", 10: "a15 b15"}
    occ = {UA[k]: k for k in range(4)}; occ.update({UB[k]: k for k in range(6)})
    for t in range(11):
        for x in GL[t].split():
            u = (UA if x[0] == 'a' else UB)[int(x[1:])]
            assert occ[u] <= t and int(x[1:]) - t >= 3; occ[u] = int(x[1:])
    for k in range(2, 6): vm.add(f"gb{k}", 4)
    gx = lambda par, mt, ks: 128 + par * 64 + (mt * 2 + ks) * 4
    gw = lambda par, nt, ks: 160 + par * 64 + (ks * 4 + nt) * 4
    gacc = lambda mt, nt: 48 + (mt * 4 + nt) * 4
    def greads(sg):
        r, k = unit(UA[sg])
        x = [f"ds_read_b128 {a(gx(sg&1, mt, ks), 4)}, v{8+2*RG[r]+ks} offset:{k*16384 + mt*2048}" for mt in range(4) for ks in range(2)]
        r, k = unit(UB[sg])
        return merge(x, w_reads(lambda t, ks: ('a', gw(sg & 1, t, ks)), 116 + 4 * RG[r], 128, 'nat', k * 16384, NT=4))
    A(f"""
    s_waitcnt vmcnt(16)
    s_barrier
    s_and_b32 {sT}, {sI}, 1
    s_lshl_b32 {sT}, {sT}, 16
    s_add_u32 s12, {sT}, {sL4}
    s_xor_b32 s13, s12, 0x10000
    s_add_u32 s14, {sL4}, 0x20000
    """)
    interleave(A, [m for m, k in pv(1) + pv(3)], merge(adma(2, UA[2]) + adma(3, UA[3]), greads(0)))
    A(f"v_max_f32 v{V_T}, v{V_L}, v{V_L+8}")
    A(f"v_cmp_u_f32 s[16:17], v{V_L}, v{V_L+8}")
    A(f"v_cmp_u_f32 s[58:59], v{V_L+4}, v{V_L+12}")
    A(f"v_max3_f32 v{V_T}, v{V_T}, v{V_L+4}, v{V_L+12}")
    A(f"v_cmp_lt_f32 vcc, s56, v{V_T}")
    A("s_or_b64 s[16:17], s[16:17], s[58:59]")
    A("s_or_b64 vcc, vcc, s[16:17]")
    A(f"s_cbranch_vccnz {name}_slow")
    A.label(f"{name}_fin")
    A(f"s_bitcmp1_b32 {sX}, 0")
    A(f"s_cselect_b32 {sT}, 0, 0x10000")
    for mt in range(4):
        for r in range(4): A(f"v_mul_u32_u24 v{gacc(mt,3)+r}, {sT}, v{25+mt}")
    fins = [f"s_load_dwordx2 s[16:17], s[0:1], {A_WO}", f"s_load_dwordx4 s[48:51], s[0:1], {B_WOUT}", f"s_load_dwordx2 s[58:59], s[0:1], {A_X}"]
    for qt in (0, 2, 1, 3):
        l = V_L + 4 * qt
        fins += [f"v_rcp_f32 v{l}, v{l}", f"s_add_u32 {sT2}, {sTB if qt < 2 else sTA}, {(qt&1) + WS_CTX // 131072}",
                 f"s_lshl_b32 {sT2}, {sT2}, 17", f"s_lshl_b32 s3, {sHEAD}, 12", f"s_add_u32 {sT2}, {sT2}, s3"]
        for ds in range(4):
            r = V_O + (qt * 8 + 2 * ds) * 4
            fins += [f"v_mul_f32 v{r+i}, v{r+i}, v{l}" for i in range(8)]
            fins += [f"v_cvt_pk_bf16_f32 v{r+i}, v{r+2*i}, v{r+2*i+1}" for i in range(4)]
            fins.append(f"buffer_store_dwordx4 {v(r,4)}, v{V_L16}, s[40:43], {sT2} offen offset:{ds*1024}{SC} ; @ctx")
    ST(21)
    sA0, sA1, sWo, sWb, sU, sZ1, sCX = "s30", "s31", "s32", "s33", "s37", "s38", "s39"
    V_Z, V_ONE1, V_XO = 44, 45, 28
    U = Asm()
    U(f"""
    v_mov_b32 v{V_Z}, 0
    v_mov_b32 v{V_ONE1}, 1
    s_lshr_b32 s3, {sX}, 1                ; os
    s_lshl_b32 {sCX}, {sI}, 2
    s_add_u32 {sCX}, {sCX}, s3
    s_lshl_b32 {sCX}, {sCX}, 8
    s_add_u32 {sCX}, {sCX}, {WS_CNT + C_CTX*256}
    s_mov_b32 s56, s50
    s_mov_b32 s57, s51
    s_lshl_b32 s3, {sW}, 10
    s_add_u32 s15, s12, s3
    s_add_u32 s26, s13, s3
    s_add_u32 s27, s14, s3
    s_mul_i32 {sZ1}, s38, 27
    s_max_u32 s3, {sI}, 1
    s_lshl_b32 s3, s3, 1
    s_and_b32 s4, {sW}, 1
    s_add_u32 s3, s3, s4
    s_lshl_b32 s3, s3, 1
    s_sub_u32 s3, s3, 4                   ; first f step of this wave
    s_add_u32 {sZ1}, {sZ1}, s3
    s_lshl_b32 {sZ1}, {sZ1}, 10
    s_cmp_eq_u32 s3, 26
    s_cselect_b32 s4, {OOB//2}, 0         ; second f step does not exist
    s_cmp_eq_u32 {sI}, 0
    s_cselect_b32 {sZ1}, {OOB//2}, {sZ1}
    s_sub_u32 s3, 15, {sI}
    s_bitcmp1_b32 {sX}, 0
    s_cselect_b32 s5, s3, {sI}            ; omt
    s_lshl_b32 s3, s5, 2
    s_add_u32 s3, s3, {sW}
    s_lshl_b32 s3, s3, 1
    s_lshr_b32 {sA0}, {sX}, 2
    s_add_u32 s3, s3, {sA0}
    s_mul_i32 {sU}, s3, {54*1024}
    s_add_u32 {sU}, {sU}, {WS_U}
    s_mul_i32 s52, s3, {16*1280}
    s_lshl_b32 {sA0}, s3, 17
    s_lshr_b32 s3, {sX}, 1                ; os
    s_lshl_b32 {sA1}, s3, 15
    s_add_u32 {sA0}, {sA0}, {sA1}
    s_xor_b32 {sA1}, {sA0}, 0x20000
    s_mul_i32 {sWo}, s3, {1024*1280}
    s_and_b32 s3, {sJ}, 3
    s_mul_i32 s53, s3, 320
    s_add_u32 {sWo}, {sWo}, s53
    s_mul_i32 s3, {sW}, {16*1280}
    s_add_u32 {sWo}, {sWo}, s3
    s_bitcmp1_b32 {sX}, 1
    s_cselect_b32 s54, 160, 0
    s_add_u32 s53, s53, s54
    s_add_u32 s52, s52, s53
    s_lshl_b32 {sWb}, s3, 1
    s_add_u32 {sWb}, {sWb}, s53
    s_mov_b32 s18, {4096*1280}
    s_mov_b32 s19, 0x20000
    s_mov_b32 s50, {864*1280}
    s_mov_b32 s51, 0x20000
    """)
    setup_w_dma(U, 14, 1280, 160, 'perm')
    U("v_and_b32 v1, 63, v0")
    for k in range(5):
        U(f"v_add_u32 v2, {k*64}, v1")
        U(f"v_mul_u32_u24 v3, 6554, v2")
        U("v_lshrrev_b32 v3, 16, v3")
        U(f"v_mul_u32_u24 v{248+k}, 10, v3")
        U(f"v_sub_u32 v2, v2, v{248+k}")
        U(f"v_mul_u32_u24 v3, 1280, v3")
        U(f"v_lshl_add_u32 v{248+k}, v2, 4, v3")
        if k & 3: U(f"v_subrev_u32 v{248+k}, {(k&3)*1024}, v{248+k}")
    U(f"""
    v_and_b32 v1, 15, v0
    v_bfe_u32 v2, v0, 4, 2
    v_mul_u32_u24 v{V_XO}, 1280, v1
    v_lshl_add_u32 v{V_XO}, v2, 3, v{V_XO}
    v_lshrrev_b32 v3, 2, v1
    v_lshl_add_u32 v3, v2, 2, v3
    v_mul_u32_u24 v3, 160, v3
    v_and_b32 v1, 3, v1
    s_and_b32 s3, s12, 0x10000
    v_lshl_add_u32 v1, v1, 3, s3
    v_add_u32 v25, v1, v3
    v_lshl_add_u32 v3, v3, 1, v1
    v_and_b32 v2, 1, v2
    s_bitcmp1_b32 {sX}, 1
    s_cselect_b32 s53, 5, 0
    s_sub_u32 s54, 5, s53
    """)
    for gp in range(2):
        for mp in range(2):
            d = 32 + gp * 2 + mp
            if mp: U(f"s_add_u32 s{53+gp}, s{53+gp}, 1")
            U(f"v_xor_b32 v1, s{53+gp}, v2")
            U(f"v_lshl_add_u32 v{d}, v1, 5, v3")
            if mp: U(f"v_subrev_u32 v{d}, 32, v{d}")
    U("s_sub_u32 s3, 0x20000, s3")
    for b_, n_ in ((32, 4), (25, 1)):
        for k in range(n_):
            U(f"v_xor_b32 v{b_+n_+k}, 0x10000, v{b_+k}")
            U(f"v_add_u32 v{b_+2*n_+k}, s3, v{b_+k}")
    osetup = texts(U)
    sig = lambda off: [f"buffer_atomic_add v{V_ONE1}, v{V_SIG}, s[40:43], {off} offen sc1"]
    RING = [('c', 0), ('lo', 0), ('hi', 0), ('lo', 1), ('lo', 2), ('hi', 1), ('hi', 2)]
    NFIN, CTXSIG, CTXPOLL, USIG, UPOLL, NPUB, PUBSIG, FPOLL = [int(x) for x in os.environ.get("TP", "4,6,9,13,18,5,39,42").split(",")]
    RATE_G, RATE_O, RATE_B = [int(x) for x in os.environ.get("RATE", "8,5,7").split(",")]
    NB = 16 + 46
    jobs = []
    for s_ in range(23):
        r, k = RING[s_ % 7]
        sd, so, st_, vr = (16, sWo, s_ * 64 * 1280, 14) if s_ < 16 else (48, sWb, (s_ - 16) * 128 * 1280, 248)
        ins = dma_group((sR5[r], k * 20480), (so, st_), sd, [vr, vr + 1, vr + 2, vr + 3], sT) + \
              [[f"s_add_u32 m0, {sR5[r]}, {k*20480+4096}", f"buffer_load_dwordx4 v{vr+4}, s[{sd}:{sd+3}], {sT} offen lds"]]
        jobs.append(([11, 12, 13, 14, 14, 15, 15][s_] if s_ < 7 else 16 + 2 * (s_ - 7) + 1, 16 + 2 * s_ - 1, tag(ins, f"w{s_}")))
    areg = lambda u: 80 + (u % 22) * 8
    aneed = lambda u: 16 + u if u < 32 else 48 + (u - 32) // 2
    for u in range(59):
        av = 0 if u < 6 else 15 if u < 14 else 16 if u < 22 else aneed(u - 22) + 1
        if u < 32:
            av = max(av, CTXPOLL + 2)
            ins = [[f"s_add_u32 {sT2}, {sx}, {WS_CTX + u*1024}", f"buffer_load_dwordx4 {a(areg(u)+4*t, 4)}, v{V_L16}, s[40:43], {sT2} offen{SC}"] for t, sx in enumerate((sA0, sA1))]
        else:
            av = max(av, 16 + UPOLL + 2)
            ins = [[f"s_add_u32 {sT2}, {sU}, {(u-32)*2048}", f"buffer_load_dwordx4 {a(areg(u), 4)}, v{V_L16}, s[40:43], {sT2} offen{SC}"],
                   f"buffer_load_dwordx4 {a(areg(u)+4, 4)}, v{V_L16}, s[40:43], {sT2} offen offset:1024{SC}"]
        jobs.append((av, aneed(u), tag(ins, f"a{u}")))
    zreg = lambda mt, q: 208 + (mt * 2 + q) * 4
    for mt in range(4):
        ins = [[f"s_add_u32 {sT2}, {sZ1}, {WS_Z1 + mt*27*1024}", f"buffer_load_dwordx4 {v(zreg(mt,0), 4)}, v{V_L16}, s[40:43], {sT2} offen{SC}"],
               [f"s_add_u32 {sT2}, {sT2}, s4", f"buffer_load_dwordx4 {v(zreg(mt,1), 4)}, v{V_L16}, s[40:43], {sT2} offen offset:1024{SC}"]]
        jobs.append((8, 16 + 2 * mt, tag(ins, f"z{mt}")))
    ins = [f"buffer_load_dwordx2 {v(208+2*m, 2)}, v{V_XO}, s[8:11], s52 offen offset:{m*32}" for m in range(5)]
    ins[0] = ["s_mov_b32 s8, s58", "s_mov_b32 s9, s59", f"s_mov_b32 s10, {SZ_XN}", ins[0]]
    jobs.append((16 + 10, NB, tag(ins, "x")))
    jobs.sort(key=lambda j: j[1])
    fifo = []
    def take(blk, n):
        while len(fifo) < n:
            c = [j for j in jobs if j[0] <= blk]
            if not c: break
            jobs.remove(c[0])
            if c[0][1] - blk < 4: print("late job", blk, c[0][1], c[0][2][-1])
            fifo.extend(c[0][2])
        out = fifo[:n]; del fifo[:n]
        return out
    oacc = lambda t, n: 128 + (t * 10 + n) * 4
    ow = lambda par, n: par * 40 + n * 4
    def oreads(b_):
        r, k = RING[(b_ // 2) % 7]
        out = []
        for n in range(10):
            for h in range(2):
                if b_ < 32: ad, off = 32 + 4 * RG[r] + (n // 5) * 2 + (n % 5 & 1), (32 * (b_ & 1) + 16 * h) * 320 + (n % 5) * 32
                else: ad, off = 25 + RG[r], ((b_ & 1) * 2 + n // 5) * 5120 + h * 2560 + (n % 5) * 32
                out.append(f"ds_read_b64_tr_b16 {a(ow(b_&1, n)+2*h, 2)}, v{ad} offset:{k*20480 + off}")
        return out[:10] if b_ == 45 else out
    ST(22)
    TS = 'tail' in EXP
    tsn = [1]
    def TT():
        if TS: ST(tsn[0]); tsn[0] += 1
    TT()
    for sg in range(16):
        tg = [f"ga{sg+1}"] * (2 <= sg + 1 < 16) + [f"gb{sg+1}"] * (2 <= sg + 1 < 16) + ["w0"] * (sg == 15) + ["ctx"] * (sg == CTXSIG) + ["pc"] * (sg == CTXPOLL + 2)
        A(f"s_waitcnt vmcnt({vm.count(*tg)}) lgkmcnt(0)" if tg else "s_waitcnt lgkmcnt(0)")
        A("s_barrier")
        if sg == CTXPOLL + 2: wchk("ctx", wpoll(V_Z, sCX), 8)
        ld = []
        if sg == CTXSIG: ld += sig(sCX)
        if sg == CTXPOLL: ld += tag(wpoll(V_Z, sCX), "pc")
        for x in GL.get(sg, "").split(): ld += (adma if x[0] == 'a' else bdma)(int(x[1:]), (UA if x[0] == 'a' else UB)[int(x[1:])])
        assert not fifo or sg > 10
        if len(ld) < RATE_G and sg >= 10: ld += take(sg, RATE_G - len(ld))
        part = lambda l, k, n: l[len(l) * k // n: len(l) * (k + 1) // n]
        misc = part(fins, sg, NFIN) if sg < NFIN else part(osetup, sg - NFIN, 11 - NFIN) if sg < 11 else []
        assert CTXSIG > NFIN
        mfl = [mfma16(v(gacc(mt, nt), 4), a(gw(sg & 1, nt, ks), 4), a(gx(sg & 1, mt, ks), 4), v(gacc(mt, 3), 4) if (sg == 0 and ks == 0) else None)
               for mt in range(4) for nt in range(4) for ks in range(2)]
        interleave(A, mfl, merge(*[x for x in (ld, greads(sg + 1) if sg < 15 else oreads(0), misc) if x]), 0, 29)
        if TS:
            if sg in (3, 7, 9, 10, 12, 15): TT()
        elif sg in (3, 10): ST({3: 23, 10: 24}[sg])
    if not TS: ST(25)
    def uepi(mt, q):
        r = gacc(mt, 2 * q); z = zreg(mt, q); out = []
        for i in range(4):
            out += [f"v_lshlrev_b32 v{240+2*i}, 16, v{z+i}", f"v_and_b32 v{241+2*i}, 0xffff0000, v{z+i}"]
        out += [f"v_mul_f32 v{r+i}, v{r+i}, v{240+i}" for i in range(8)]
        out += [f"v_cvt_pk_bf16_f32 v{r+i}, v{r+2*i}, v{r+2*i+1}" for i in range(4)]
        if q == 0: pre = [f"s_add_u32 s3, s53, {WS_U + mt*54*1024}"]
        else: pre = ["s_add_u32 s3, s3, s4"]
        if mt == 0 and q == 0: pre = [f"s_and_b32 s3, {sX}, 1", "s_lshl_b32 s3, s3, 10", f"s_lshl_b32 s53, {sZ1}, 1", "s_add_u32 s53, s53, s3"] + pre
        out.append(pre + [f"buffer_store_dwordx4 {v(r,4)}, v{V_L16}, s[40:43], s3 offen offset:{q*2048}{SC} ; @u"])
        return out
    pub = []
    for q in range(1, 4):
        for m in range(5):
            pre = []
            if m == 0: pre = [f"s_xor_b32 s3, s2, {q << 1}", "s_lshl_b32 s3, s3, 2", f"s_add_u32 s3, s3, {sW}", f"s_mul_i32 s3, s3, {15*1024}",
                              f"s_add_u32 s3, s3, {WS_X + (q-1)*5120}"]
            if m == 4: pre = ["s_add_u32 s3, s3, 4096"]
            pub.append(pre + [f"buffer_store_dwordx4 {v(oacc(q>>1, (q&1)*5+m), 4)}, v{V_L16}, s[40:43], s3 offen offset:{(m&3)*1024}{SC} ; @pub"])
    upl = [f"s_lshl_b32 s54, s5, 8", f"s_add_u32 s54, s54, {WS_CNT + C_U*256}"]
    fpl = [f"s_lshl_b32 s54, s5, 2", f"s_and_b32 s3, {sJ}, 3", "s_add_u32 s54, s54, s3", "s_lshl_b32 s54, s54, 8", f"s_add_u32 s54, s54, {WS_CNT + C_FIN*256}"]
    rcv = []
    for m in range(5):
        for q in range(3):
            pre = [f"s_add_u32 s3, s3, {5120 if q else hex(1024 - 10240 & 0xffffffff)}"]
            if m + q == 0: pre = ["s_lshl_b32 s3, s2, 2", f"s_add_u32 s3, s3, {sW}", f"s_mul_i32 s3, s3, {15*1024}", f"s_add_u32 s3, s3, {WS_X}"]
            rcv.append(pre + [f"buffer_load_dwordx4 {v(48+(m*3+q)*4, 4)}, v{V_L16}, s[40:43], s3 offen{SC} ; @r{m}"])
    for b_ in range(46):
        us = [b_] if b_ < 32 else [32 + 2 * (b_ - 32) + kk for kk in range(2) if 2 * (b_ - 32) + kk < 27]
        bar = (b_ & 1) and b_ <= 43
        tg = [f"a{u}" for u in us] + [f"w{b_//2+1}"] * bool(bar) + [f"z{b_//2}"] * (b_ < 8) + ["u"] * (b_ == USIG) + ["pu"] * (b_ == UPOLL + 2) + ["pub"] * (b_ == PUBSIG) + ["pf"] * (b_ == FPOLL + 2)
        A(f"s_waitcnt vmcnt({min(48, vm.count(*tg))}) lgkmcnt(0)")
        if bar: A("s_barrier")
        if b_ == UPOLL + 2: wchk("u", wpoll(V_Z, "s54"), 14)
        if b_ == FPOLL + 2: wchk("f", wpoll(V_Z, "s54"), 4)
        ld = []; misc = []; nv = 0
        if b_ < 8: misc = uepi(b_ // 2, b_ & 1); nv = 1
        if b_ == USIG:
            assert bar
            ld += [[f"s_lshr_b32 s3, {sX}, 1", "s_lshl_b32 s3, s3, 2", f"s_and_b32 s53, {sJ}, 3", "s_add_u32 s3, s3, s53", "s_lshl_b32 s3, s3, 8",
                    f"s_add_u32 s3, s3, {WS_CNT + C_U*256}", f"s_cmp_eq_u32 {sI}, 0", f"s_cselect_b32 s3, {OOB}, s3"] + sig("s3")]
        if b_ == UPOLL: ld += tag([upl + wpoll(V_Z, "s54")], "pu")
        if b_ == PUBSIG:
            assert bar
            ld += [fpl + sig("s54")]
        if 32 <= b_ < 32 + NPUB: misc = part(pub, b_ - 32, NPUB); nv = len(misc)
        if b_ == FPOLL: ld += tag(wpoll(V_Z, "s54"), "pf")
        if b_ >= FPOLL + 2: misc = part(rcv, b_ - FPOLL - 2, 44 - FPOLL)
        ld += take(16 + b_, (RATE_O if b_ < 32 else RATE_B) - len(ld) - nv)
        if b_ < 32:
            mfl = [mfma16(v(oacc(t, n), 4), a(ow(b_ & 1, n), 4), a(areg(b_) + 4 * t, 4), "0" if b_ == 0 else None)
                   for n in ([5, 6, 7, 8, 9, 0, 1, 2, 3, 4] if b_ == 31 else range(10)) for t in (1, 0)]
        else:
            mfl = [mfma16(v(oacc(0, m), 4), a(ow(b_ & 1, kk * 5 + m), 4), a(areg(u) + 4 * uu, 4)) for kk, u in enumerate(us) for m in range(5) for uu in range(2)]
        rd = oreads(b_ + 1) if b_ < 45 else []
        interleave(A, mfl, merge(*[x for x in (ld, rd, misc) if x]), 0, len(mfl) - 3)
        if TS:
            if b_ in (1, 3, 5, 7, 10, 12, 13, 16, 19, 20, 23, 27, 31, 33, 35, 38, 39, 41, 43): TT()
        elif b_ in (7, 31): ST({7: 26, 31: 27}[b_])
    assert not jobs and not fifo
    ST(28)
    srd(A, 16, 56, 57, 0, SZ_XN)
    if FPOLL >= 44:
        A("s_waitcnt vmcnt(0)")
        wchk("f", wpoll(V_Z, "s54"), 4)
        ST(29)
        emit(A, rcv)
    A(f"s_waitcnt vmcnt({vm.count('x')})")
    for m in range(5):
        r = oacc(0, m)
        for i in range(2):
            A(f"v_lshlrev_b32 v{240+2*i}, 16, v{208+2*m+i}")
            A(f"v_and_b32 v{241+2*i}, 0xffff0000, v{208+2*m+i}")
        for i in range(2): A(f"v_pk_add_f32 {v(r+2*i,2)}, {v(r+2*i,2)}, {v(240+2*i,2)}")
    for m in range(5):
        r = oacc(0, m); p = 48 + m * 12
        A(f"s_waitcnt vmcnt({vm.count(f'r{m}')})")
        for i in range(2): A(f"v_pk_add_f32 {v(p+2*i,2)}, {v(p+2*i,2)}, {v(p+4+2*i,2)}")
        for i in range(2): A(f"v_pk_add_f32 {v(r+2*i,2)}, {v(r+2*i,2)}, {v(p+8+2*i,2)}")
        for i in range(2): A(f"v_pk_add_f32 {v(r+2*i,2)}, {v(r+2*i,2)}, {v(p+2*i,2)}")
        for i in range(2): A(f"v_cvt_pk_bf16_f32 v{r+i}, v{r+2*i}, v{r+2*i+1}")
        A(f"buffer_store_dwordx2 {v(r,2)}, v{V_XO}, s[16:19], s52 offen offset:{m*32}")
    ST(30)
    if ST.on: A("s_waitcnt vmcnt(0)")
    ST(31)
    (STD if 'qz' in EXP else ST).dump(6, 7, sW)
    A(f"{name}_end:")
    A("s_endpgm")
    A.vm = None
    A.label(f"{name}_hnd")
    HS = 'hnd' in EXP and ST.on
    if HS: ST(13)
    def HX(k):
        if HS:
            A(f"s_mov_b32 s{64+1+2*k}, s{64+13}")
            ST(2 + 2 * k)
    A(f"""
    s_waitcnt vmcnt(8)
    s_lshr_b32 {sT}, 0x10000, {sRET}
    s_sub_u32 {sTRIG}, {sKV}, {sT}
    s_add_u32 {sTRIG}, {sTRIG}, 1
    s_add_u32 {sST}, {sST}, 1
    s_lshl_b32 s59, {sX}, 5
    s_add_u32 s59, s59, {sJ}
    """)
    for k in range(1, 6):
        A(f"s_cmp_eq_u32 {sST}, {k+1}")
        A(f"s_cbranch_scc1 {name}_h{k}")
    A.label(f"{name}_h0")
    emit(A, poll_ld())
    HX(0)
    A.label(f"{name}_hret")
    A(f"s_cmp_eq_u32 {sRET}, 0")
    A(f"s_cbranch_scc1 {name}_loopB_r")
    A(f"s_branch {name}_loopAB_r")
    ZD = [116, 120, 124, 24]
    A.label(f"{name}_h1")
    A(f"s_lshr_b32 {sT}, s59, 4")
    A(f"s_lshl_b32 s3, 1, {sT}")
    poll_chk("z", 14, "0", "s3")
    A(f"""
    v_lshrrev_b32 v1, 5, v0
    v_mul_u32_u24 v1, 1728, v1
    v_and_b32 v3, 31, v0
    v_lshl_add_u32 v21, v3, 4, v1
    v_cmp_gt_u32 vcc, 12, v3
    v_mov_b32 v1, {OOB}
    v_cndmask_b32 v22, v1, v21, vcc
    v_cndmask_b32 v23, 0, 1.0, vcc
    s_mul_i32 s3, s59, {8*1728}
    s_add_u32 s3, s3, {WS_Z2}
    s_cmp_eq_u32 {sTRIG}, {18*16384 + 3*4096 + 1}
    s_cselect_b32 {sTRIG}, {16*16384 + 3*4096 + 1}, {sTRIG}
    """)
    for j in range(4): A(f"buffer_load_dwordx4 {v(ZD[j],4)}, v{21 + (j == 3)}, s[40:43], s3 offen offset:{j*512}{SC}")
    HX(1)
    A(f"s_branch {name}_hret")
    A.label(f"{name}_h2")
    ln_lean(A, [ZD[j] + i for j in range(4) for i in range(4)], 8, 864, red32, pad=(12, 23), X=(1, 2))
    A(f"""
    v_bfe_u32 v1, v0, 5, 2
    s_and_b32 {sT}, s59, 1
    s_lshl_b32 {sT}, {sT}, 2
    v_or_b32 v1, {sT}, v1
    v_lshlrev_b32 v1, 1, v1
    v_and_b32 v2, 15, v0
    v_xor_b32 v1, v1, v2
    v_lshlrev_b32 v1, 4, v1
    v_lshrrev_b32 v2, 5, v0
    v_lshl_add_u32 v1, v2, 8, v1
    v_bfe_u32 v2, v0, 4, 1
    v_lshl_add_u32 v1, v2, 19, v1
    s_lshl_b32 s3, s59, 11
    """)
    for j in range(4):
        A(f"s_add_u32 s3, s3, {MB if j else WS_Z2N}")
        A(f"buffer_store_dwordx4 {v(ZD[j],4)}, v1, s[40:43], s3 offen{SC}")
    HX(2)
    A(f"s_branch {name}_hret")
    A.label(f"{name}_h3")
    A(f"""
    v_cmp_eq_u32 vcc, 0, v{V_L16}
    v_mov_b32 v2, {OOB}
    v_cndmask_b32 v2, v2, 0, vcc
    s_lshr_b32 s3, s2, 2
    s_lshl_b32 s3, s3, 8
    s_add_u32 s3, s3, {WS_CNT + C_ZN*256}
    s_lshr_b32 {sT}, {sW}, 1
    s_lshl_b32 {sT}, {sT}, 14
    s_add_u32 {sTRIG}, {sT}, {sL4}
    s_add_u32 {sTRIG}, {sTRIG}, {(NS4-7)*16384+1}
    """)
    emit(A, wsig("s3", 2))
    HX(3)
    A(f"s_branch {name}_hret")
    zl = [f"v_lshlrev_b32 v2, 4, v{V_L16}", f"s_mov_b32 s3, {WS_CNT + C_ZN*256}"] + wpoll(2, "s3")
    A.label(f"{name}_h4")
    emit(A, zl)
    HX(4)
    A(f"s_branch {name}_hret")
    A.label(f"{name}_h5")
    wchk("zn", zl, 16)
    setup_xrow_dma(A, 21, 4096)
    A("s_mov_b32 s59, m0")
    A(f"s_mov_b32 {sTRIG}, 0")
    for k in range(2): emit(A, dma_group((sL4, 0x20000 + k * 16384), (sAG, hex(-k * 128 & 0xffffffff)), 44, [21, 22, 23, 24], sT))
    A("s_mov_b32 m0, s59")
    A(f"""
    s_lshl_b32 s38, s38, 1
    s_lshr_b32 s59, {sW}, 1
    s_add_u32 s38, s38, s59
    s_lshl_b32 s38, s38, 2                ; first t tile of this wave's G rows
    s_lshl_b32 s3, s38, 5
    v_and_b32 v1, 15, v0
    v_lshl_add_u32 v1, v1, 1, s3
    """)
    for mt in range(4): A(f"global_load_ushort v{25+mt}, v1, s[4:5] offset:{mt*32}")
    A(f"s_and_b32 s3, {sI}, 1")
    A(f"s_lshl_b32 s3, s3, 16")
    A(f"s_lshl_b32 {sT}, s59, 13")
    A(f"s_add_u32 {sT}, {sT}, s3")
    setup_xrow_read(A, 8, sT)
    A(f"s_and_b32 {sT}, {sW}, 1")
    A(f"s_lshl_b32 {sT}, {sT}, 2")
    setup_w_read(A, 116, 128, 'nat', "s3", sT, NT=4)
    A("s_sub_u32 s3, 0x20000, s3")
    for b_, n_ in ((8, 2), (116, 4)):
        for k in range(n_):
            A(f"v_xor_b32 v{b_+n_+k}, 0x10000, v{b_+k}")
            A(f"v_add_u32 v{b_+2*n_+k}, s3, v{b_+k}")
    HX(5)
    A(f"s_branch {name}_hret")
    for i_ in range(8):
        for w_ in range(4):
            N_ = 64 - 4 * i_
            tops = [(n, 0) for n in range(5 - w_, 63 - 8 * i_ - w_) if n % 2 == 0] + [(n, 1) for n in range(65 - 8 * i_ - w_, N_ + 1) if n % 2 == 0]
            th = N0; fired = []
            for n, ab in tops:
                if len(fired) < 6 and n >= th:
                    fired.append(n); th = N_ - NS4 if len(fired) == 4 else n + (2 if ab else 4)
                    if len(fired) == 2 and w_ == 3 and N_ - 7 - th + 1 == 18: th += 2
            if os.environ.get("SHOWTRIG"): print(i_, w_, N_, fired)
            assert len(fired) == 6 and fired[5] <= N_ - 8, (i_, w_, fired)
            assert all(fired[k+1] - fired[k] >= 2 for k in range(5))
    for tg, ld, chk in spins:
        A.label(f"{name}_spin_{tg}")
        A("s_mov_b32 s101, 0x40000")
        A.label(f"{name}_spinl_{tg}")
        c = "s101"
        emit(A, ld)
        A("s_waitcnt vmcnt(0)")
        emit(A, chk)
        A(f"s_cbranch_scc0 {name}_ret_{tg}")
        A(f"s_sub_u32 {c}, {c}, 1")
        A(f"s_cbranch_scc0 {name}_spinl_{tg}")
        A(f"s_branch {name}_ret_{tg}")
    A.label(f"{name}_slow")
    A("s_nop 7")
    M, D, T = V_T, V_T + 1, V_T + 2
    for qt in range(4):
        u = qt & 1
        A(f"s_lshr_b32 {sT2}, {sTB if qt < 2 else sTA}, 1")
        A(f"s_lshl_b32 {sT2}, {sT2}, 14")
        A(f"s_mov_b32 {sT}, {sT2}")
        for i in range(32): A(f"v_mov_b32 v{V_O+qt*32+i}, 0")
        for i in range(4): A(f"v_mov_b32 v{V_L+4*qt+i}, 0")
        A(f"v_mov_b32 v{M}, s57")
        A.label(f"{name}_sl{qt}")
        for j in range(16):
            if j % 4 == 0: A(f"s_add_u32 s59, {sT}, {j*1024}")
            A(f"buffer_load_dwordx4 {a(A_K+4*j,4)}, v{V_L16}, s[8:11], s59 offen offset:{(j&3)*1024}{SC}")
        A("s_waitcnt vmcnt(0)")
        for t in range(2):
            for ds in range(4):
                A(mfma16(v(S(qt, t), 4), a(A_K + (t * 4 + ds) * 4, 4), a(A_Q + (qt * 4 + ds) * 4, 4), "0" if ds == 0 else None))
        A("s_nop 7")
        A(f"s_cmp_lg_u32 {sT}, {sT2}")
        A(f"s_cbranch_scc1 {name}_sn{qt}")
        A.label(f"{name}_sm{qt}")
        emit(A, mask(qt, T))
        if u == 0:
            for r in range(4): A(f"v_mov_b32 v{S(qt,1,r)}, s57")
        A.label(f"{name}_sn{qt}")
        emit(A, rowmax(qt, 8, D, T))
        A(f"v_max_f32 v{D}, v{D}, v{M}")
        A(f"v_sub_f32 v{T}, v{M}, v{D}")
        A(f"v_exp_f32 v{T}, v{T}")
        A(f"v_mov_b32 v{M}, v{D}")
        for i in range(8): A(f"v_sub_f32 v{S(qt,0)+i}, v{S(qt,0)+i}, v{D}")
        emit(A, exps(qt))
        for i in range(32): A(f"v_mul_f32 v{V_O+qt*32+i}, v{V_O+qt*32+i}, v{T}")
        for i in range(4): A(f"v_mul_f32 v{V_L+4*qt+i}, v{V_L+4*qt+i}, v{T}")
        emit(A, cvts(qt))
        for m, k in pv(qt): A(m)
        A("s_nop 7")
        A(f"s_sub_u32 {sT}, {sT}, 16384")
        A(f"s_cbranch_scc0 {name}_sl{qt}")
        A.label(f"{name}_sx{qt}")
    A.label(f"{name}_last")
    A(f"s_branch {name}_fin")
    A.fix_blocks()
    return f"; @launch kernel={name} grid=(256,1,1) block=(256,1,1) lds=163840", kernel_wrap(name, A.text(), 512, sgpr=102, accum=256), A

if __name__ == '__main__':
    import re
    h, t, A = kf()
    n = "kf_kernel"
    names = [l for l, b in A.blocks]
    def span(a_, b_): return names[names.index(a_):names.index(b_)]
    N = lambda x: f"{n}_{x}"
    nb = lambda t: [x for x in t if not (x and re.search(r'_b[2-9]$', x))]
    B0, B1, C0, C1 = [[N("loopB"), N("loopB_r")], [N("loopB1")], [N("loopAB"), N("loopAB_r")], [N("loopAB1")]]
    H = {0: [N("h0")], 1: span(N("h1"), N("h2")), 2: [N("h2")], 3: [N("h3")], 4: [N("h4")], 5: span(N("h5"), N("spin_xnk"))}
    hl = lambda L0, L1: sum([[L0[0], N("hnd")] + H[k] + [N("hret"), L0[1]] + L1 for k in range(6)], [])
    z1 = span(N("z"), N("zs1_0")) + sum([[N(f"zs1_{q}"), N(f"zs3_{q}")] for q in range(4)], []) + [N("qc0")]
    z2 = [x for x in span(N("z"), N("zs1_0")) if '_wb' not in x] + sum([[N(f"zs2_{q}"), N(f"zs3_{q}")] for q in range(4)], []) + [N("qc1")]
    att1 = span(N("q"), B0[0]) + B0 + B1 + hl(B0, B1) + span(N("preA"), C0[0]) + C0 + C1 + C0 + C1 + span(N("drain"), N("end"))
    att2 = nb(span(N("q"), B0[0])) + B1 + B0 + B1 + B0 + nb(span(N("preA"), C0[0])) + C1 + hl(C0, C1) + C0 + C1 + C0 + C1 + C0 + span(N("drain"), N("end"))
    sl = [N("drain"), N("slow")] + sum([[N(f"sl{q}"), N(f"sm{q}"), N(f"sn{q}"), N(f"sl{q}"), N(f"sn{q}"), N(f"sx{q}")] for q in range(4)], []) + [N("last")] + span(N("fin"), N("end"))
    att3 = span(N("q"), B0[0]) + B0 + span(N("preA"), C0[0]) + sl
    P0 = names[:names.index(N("k"))]
    for nm, tr in (("k-z1", P0 + span(N("k"), N("v")) + z1 + att1), ("v-z2", P0 + span(N("v"), N("z")) + z2 + att2),
                   ("k-noz", P0 + span(N("k"), N("v")) + z1 + att3)):
        for p in [p for p in A.check(tr, nm) if 'buffer_load_dword v31' not in p][:30]: print(p)
    print(A.count())
```
